```python
import torch

def _softmax(x, axis=-1):
    return torch.softmax(x, dim=axis)
def _gelu(x):
    return torch.nn.functional.gelu(x, approximate="tanh")
def _silu(x):
    return torch.nn.functional.silu(x)
def _sigmoid(x):
    return torch.sigmoid(x)
def _layernorm(x, axis=-1, eps=1e-5):
    m = x.mean(dim=axis, keepdim=True)
    v = x.var(dim=axis, keepdim=True, unbiased=False)
    return (x - m) / torch.sqrt(v + eps)
def _scatter_add(tgt, idx, src, axis=0):
    return tgt.clone().index_add_(axis, idx, src)
def _segment_sum(src, seg, n):
    out = torch.zeros((n,) + src.shape[1:], dtype=src.dtype)
    return out.index_add_(0, seg, src)
def _pad(x, pw):
    flat = tuple(v for pair in reversed(pw) for v in pair)
    return torch.nn.functional.pad(x, flat)

kernel_name = 'gated_mix__sliding_block__softmax_full_mha__prompt'

def setup_inputs():

    _w = (lambda a: (lambda t: t.to(torch.bfloat16) if t.is_floating_point() else t)(torch.as_tensor(a)))
    def _A_setup():
        B, S, D = 1, 2048, 512
        return {
            "x": _w((lambda *s: torch.randn(*s, dtype=torch.bfloat16) * 0.05)(B, S, D)),
            "wqkv": _w((lambda *s: torch.randn(*s, dtype=torch.bfloat16) * 1.6)(D, 3 * D)),
            "wo": _w((lambda *s: torch.randn(*s, dtype=torch.bfloat16) * 0.05)(D, D)),
        }
    _A_in = _A_setup()

    def _B_setup():
        B, S, D = 1, 2048, 512
        return {
            "x": _w((lambda *s: torch.randn(*s, dtype=torch.bfloat16) * 0.05)(B, S, D)),
            "wqkv": _w((lambda *s: torch.randn(*s, dtype=torch.bfloat16) * 1.6)(D, 3 * D)),
            "wo": _w((lambda *s: torch.randn(*s, dtype=torch.bfloat16) * 0.1)(D, D)),
        }
    _B_in = _B_setup()

    return {
        "A_x": _A_in["x"],
        "A_wqkv": _A_in["wqkv"],
        "A_wo": _A_in["wo"],
        "B_x": _B_in["x"],
        "B_wqkv": _B_in["wqkv"],
        "B_wo": _B_in["wo"],
        "gate_w": _w((lambda *s: torch.randn(*s, dtype=torch.bfloat16) * 0.05)(512) * 16.0),
    }

def reference(A_x, A_wqkv, A_wo, B_x, B_wqkv, B_wo, gate_w):
    def _A_ref(x, wqkv, wo):
        B, S, D = x.shape
        H = 32; Dh = D // H; W = 256
        qkv = (lambda x, *d: x.permute(*d))((x @ wqkv).reshape(B, S, 3, H, Dh), 2, 0, 3, 1, 4)
        q, k, v = qkv[0], qkv[1], qkv[2]
        scores = torch.einsum("bhqd,bhkd->bhqk", q, k) * (Dh ** -0.5)
        idx = torch.arange(S)
        mask = (idx[:, None] - idx[None, :] >= 0) & (idx[:, None] - idx[None, :] < W)
        scores = torch.where(mask[None, None], scores, -1e9)
        p = _softmax(scores, axis=-1)
        o = torch.einsum("bhqk,bhkd->bhqd", p, v)
        return (lambda x, *d: x.permute(*d))(o, 0, 2, 1, 3).reshape(B, S, D) @ wo

    def _B_ref(x, wqkv, wo):
        B, S, D = x.shape
        H = 32; Dh = D // H
        qkv = (lambda x, *d: x.permute(*d))((x @ wqkv).reshape(B, S, 3, H, Dh), 2, 0, 3, 1, 4)
        q, k, v = qkv[0], qkv[1], qkv[2]
        scale = Dh ** -0.5
        scores = torch.einsum("bhqd,bhkd->bhqk", q, k) * scale
        p = _softmax(scores, axis=-1)
        o = torch.einsum("bhqk,bhkd->bhqd", p, v)
        return (lambda x, *d: x.permute(*d))(o, 0, 2, 1, 3).reshape(B, S, D) @ wo

    x = A_x
    g = _sigmoid((x * gate_w).sum(-1, keepdims=True))
    a = _A_ref(x, A_wqkv, A_wo)
    b = _B_ref(x, B_wqkv, B_wo)
    return g * a + (1 - g) * b
```

```python
import sys, math

NAME = "gated_mix__sliding_block__softmax_full_mha__prompt"

QF_OFF = 0
KV_OFF = 4 << 20
OF_OFF = 12 << 20
WO_OFF = 16 << 20
G_OFF = 17 << 20
WS_BYTES = 18 << 20

QSCALE = 0.25 * math.log2(math.e)

import struct
def f32(x):
    return struct.unpack("<I", struct.pack("<f", x))[0]

class Asm:
    def __init__(self):
        self.lines = []
    def __call__(self, s):
        for l in s.split("\n"):
            l = l.strip()
            if not l:
                continue
            if l.endswith(":") or l.startswith("."):
                self.lines.append(l)
            else:
                self.lines.append("    " + l)
    def text(self):
        return "\n".join(self.lines) + "\n"

def vr(b, n):
    return f"v[{b}:{b+n-1}]" if n > 1 else f"v{b}"
def sr(b, n):
    return f"s[{b}:{b+n-1}]" if n > 1 else f"s{b}"

def srd(a, d, base, nbytes, off=0):
    if off:
        a(f"s_add_u32 s{d}, s{base}, {hex(off)}")
        a(f"s_addc_u32 s{d+1}, s{base+1}, 0")
    else:
        a(f"s_mov_b32 s{d}, s{base}")
        a(f"s_mov_b32 s{d+1}, s{base+1}")
    a(f"s_mov_b32 s{d+2}, {hex(nbytes)}")
    a(f"s_mov_b32 s{d+3}, 0x20000")

def kernel_head(a, label):
    a(f".globl {label}")
    a(".p2align 8")
    a(f".type {label},@function")
    a(f"{label}:")

def descriptor(label, nv, ns=102, acc=None):
    acc = acc or ((nv + 3) // 4 * 4)
    return f""".amdhsa_kernel {label}
  .amdhsa_next_free_vgpr {nv}
  .amdhsa_next_free_sgpr {ns}
  .amdhsa_accum_offset {acc}
  .amdhsa_group_segment_fixed_size 0
  .amdhsa_kernarg_size 80
  .amdhsa_user_sgpr_count 2
  .amdhsa_user_sgpr_kernarg_segment_ptr 1
  .amdhsa_system_sgpr_workgroup_id_x 1
.end_amdhsa_kernel
"""

MFMA = "v_mfma_f32_32x32x16_bf16"
SMFMAC = "v_smfmac_f32_32x32x32_bf16"

K1_SLOT = 40960
K1_LDS = 4 * K1_SLOT

def gen_k1(a, cfg):
    L = "qkv_kernel"
    kernel_head(a, L)
    a("s_cmp_ge_u32 s2, 256")
    a("s_cbranch_scc1 K1_END")
    a("s_load_dwordx2 s[4:5], s[0:1], 0")
    a("s_load_dwordx2 s[6:7], s[0:1], 8")
    a("s_load_dwordx2 s[8:9], s[0:1], 32")
    a("s_load_dwordx2 s[10:11], s[0:1], 72")
    a("s_load_dwordx2 s[12:13], s[0:1], 16")
    a("s_load_dwordx2 s[14:15], s[0:1], 40")
    a("s_load_dwordx2 s[16:17], s[0:1], 48")
    a("v_lshrrev_b32 v1, 6, v0")
    a("v_and_b32 v0, 63, v0")
    a("s_and_b32 s20, s2, 7")
    a("s_lshr_b32 s21, s2, 3")
    a("v_readfirstlane_b32 s18, v1")
    if cfg.get("k1map", 2) == 1:
        a("s_and_b32 s22, s20, 1")
        a("s_lshl_b32 s22, s22, 3")
        a("s_and_b32 s23, s21, 7")
        a("s_add_u32 s22, s22, s23")
        a("s_lshr_b32 s23, s20, 1")
        a("s_lshl_b32 s23, s23, 2")
        a("s_lshr_b32 s24, s21, 3")
        a("s_add_u32 s23, s23, s24")
        a("s_lshr_b32 s24, s23, 3")
        a("s_and_b32 s25, s23, 7")
    else:
        a("s_lshr_b32 s22, s21, 1")
        a("s_and_b32 s24, s21, 1")
        a("s_mov_b32 s25, s20")
    MT, BR, HG, WV = 22, 24, 25, 18
    a("s_waitcnt lgkmcnt(0)")
    srd(a, 28, 4, 2048 * 512 * 2)
    a(f"s_cmp_eq_u32 s{BR}, 0")
    a("s_cselect_b32 s32, s6, s8")
    a("s_cselect_b32 s33, s7, s9")
    a(f"s_mov_b32 s34, {hex(512*1536*2)}")
    a("s_mov_b32 s35, 0x20000")
    srd(a, 36, 10, WS_BYTES)
    a(f"s_cmp_ge_u32 s{WV}, 4")
    a("s_cbranch_scc0 K1_CONS")

    a(f"s_sub_u32 s{WV}, s{WV}, 4")
    a("v_lshrrev_b32 v1, 3, v0")
    a("v_and_b32 v2, 7, v0")
    a("v_lshrrev_b32 v3, 1, v1")
    a(f"s_lshl_b32 s40, s{MT}, 17")
    a(f"s_lshl_b32 s41, s{WV}, 15")
    a("s_add_u32 s40, s40, s41")
    for v in range(4):
        a(f"v_xor_b32 v4, v2, v3")
        if v & 1:
            a("v_xor_b32 v4, 4, v4")
        a("v_lshlrev_b32 v4, 4, v4")
        a("v_lshl_add_u32 v4, v1, 10, v4")
        a(f"v_add_u32 v{8+v}, s40, v4")
        if v < 3:
            a("s_add_u32 s40, s40, 8192")
    a("v_and_b32 v4, 1, v3")
    a("v_lshlrev_b32 v4, 2, v4")
    a("v_xor_b32 v4, v2, v4")
    a("v_lshlrev_b32 v4, 4, v4")
    a("v_mul_u32_u24 v5, 3072, v1")
    a("v_add_u32 v4, v4, v5")
    a(f"s_mul_i32 s40, s{WV}, 6")
    a(f"s_lshl_b32 s43, s{HG}, 7")
    for v in range(6):
        a("s_lshr_b32 s41, s40, 3")
        a("s_and_b32 s42, s40, 7")
        a("s_mul_i32 s42, s42, 24576")
        a("s_lshl_b32 s41, s41, 10")
        a("s_add_u32 s41, s41, s42")
        a("s_add_u32 s41, s41, s43")
        a(f"v_add_u32 v{12+v}, s41, v4")
        if v < 5:
            a("s_add_u32 s40, s40, 1")
    a(f"s_lshl_b32 s44, s{WV}, 12")
    a(f"s_mul_i32 s45, s{WV}, 6144")
    a("s_add_u32 s45, s45, 16384")

    def issue_chunk(c):
        slot = (c & 3) * K1_SLOT
        a(f"s_mov_b32 s46, {c*128}")
        a(f"s_mov_b32 s47, {c*64*3072}")
        for v in range(4):
            a(f"s_add_u32 m0, s44, {slot + v*1024}")
            a("s_nop 0")
            a(f"buffer_load_dwordx4 v{8+v}, s[28:31], s46 offen lds")
        for v in range(6):
            a(f"s_add_u32 m0, s45, {slot + v*1024}")
            a("s_nop 0")
            a(f"buffer_load_dwordx4 v{12+v}, s[32:35], s47 offen lds")

    for c in range(4):
        issue_chunk(c)
    a("s_waitcnt vmcnt(30)")
    a("s_barrier")
    NSIDE = 11
    for c in range(7):
        if c <= 4:
            n = 20
        elif c == 5:
            n = 10
        else:
            n = 0
        if c >= 4:
            n += NSIDE
        a(f"s_waitcnt vmcnt({n})")
        a("s_barrier")
        if c + 4 <= 7:
            issue_chunk(c + 4)
        if c == 3:
            a("s_lshl_b32 s48, s2, 2")
            a(f"s_add_u32 s48, s48, s{WV}")
            a("s_lshr_b32 s49, s48, 4")
            a("s_and_b32 s50, s48, 15")
            a("s_cmp_lt_u32 s49, 32")
            a("s_cselect_b32 s52, s12, s14")
            a("s_cselect_b32 s53, s13, s15")
            a(f"s_mov_b32 s54, {hex(512*512*2)}")
            a("s_mov_b32 s55, 0x20000")
            srd(a, 56, 16, 1024)
            a("s_and_b32 s51, s49, 31")
            a("s_lshl_b32 s51, s51, 14")
            a("s_lshl_b32 s60, s50, 6")
            a("s_add_u32 s51, s51, s60")
            a("v_lshrrev_b32 v20, 5, v0")
            a("v_lshlrev_b32 v20, 12, v20")
            a("v_and_b32 v21, 31, v0")
            a("v_lshl_add_u32 v20, v21, 1, v20")
            a("v_add_u32 v21, 0x2000, v20")
            for j in range(8):
                a(f"buffer_load_ushort v{24+j}, v{20 + (j>>2)}, s[52:55], s51 offen offset:{(j&3)*1024}")
            a("v_lshlrev_b32 v22, 4, v0")
            a("s_lshl_b32 s61, s48, 11")
            a("buffer_load_dwordx4 v[32:35], v22, s[28:31], s61 offen")
            a("buffer_load_dwordx4 v[36:39], v22, s[28:31], s61 offen offset:1024")
            a("buffer_load_dwordx4 v[40:43], v22, s[56:59], 0 offen")
    a("s_waitcnt vmcnt(0)")
    for j in range(4):
        a(f"v_lshl_or_b32 v{44+j}, v{25+2*j}, 16, v{24+2*j}")
    a("s_lshl_b32 s60, s50, 16")
    a("s_lshl_b32 s62, s49, 10")
    a("s_add_u32 s60, s60, s62")
    a(f"s_add_u32 s60, s60, {hex(WO_OFF)}")
    a("buffer_store_dwordx4 v[44:47], v22, s[36:39], s60 offen")
    a("v_mov_b32 v48, 0")
    a("v_mov_b32 v49, 0")
    for j in range(4):
        a(f"v_dot2_f32_bf16 v48, v{32+j}, v{40+j}, v48")
        a(f"v_dot2_f32_bf16 v49, v{36+j}, v{40+j}, v49")
    a("s_nop 4")
    for sh in ("row_shr:1", "row_shr:2", "row_shr:4", "row_shr:8", "row_bcast:15 row_mask:0xa", "row_bcast:31 row_mask:0xc"):
        a(f"v_add_f32_dpp v48, v48, v48 {sh}")
        a(f"v_add_f32_dpp v49, v49, v49 {sh}")
        a("s_nop 1")
    a(f"s_mov_b32 s62, {hex(f32(-math.log2(math.e)))}")
    a("v_mul_f32 v48, s62, v48")
    a("v_mul_f32 v49, s62, v49")
    a("v_exp_f32 v48, v48")
    a("v_exp_f32 v49, v49")
    a("s_nop 1")
    a("v_add_f32 v48, 1.0, v48")
    a("v_add_f32 v49, 1.0, v49")
    a("v_rcp_f32 v48, v48")
    a("v_rcp_f32 v49, v49")
    a("v_mov_b32 v50, 0")
    a("s_lshl_b32 s60, s48, 3")
    a(f"s_add_u32 s60, s60, {hex(G_OFF)}")
    a("v_cmp_eq_u32 vcc, 63, v0")
    a("s_and_saveexec_b64 s[62:63], vcc")
    a("buffer_store_dwordx2 v[48:49], v50, s[36:39], s60 offen")
    a("s_endpgm")

    a("K1_CONS:")
    ACC = 64
    FR = [16, 36]
    XA = 4
    WA = 8
    a(f"s_and_b32 s40, s{WV}, 1")
    a(f"s_lshr_b32 s41, s{WV}, 1")
    a("v_and_b32 v1, 31, v0")
    a("v_lshrrev_b32 v2, 5, v0")
    a("v_lshrrev_b32 v3, 1, v1")
    a("v_and_b32 v3, 7, v3")
    a("s_lshl_b32 s42, s40, 13")
    for ks in range(4):
        a(f"v_or_b32 v9, {2*ks}, v2")
        a("v_xor_b32 v9, v9, v3")
        a("v_lshlrev_b32 v9, 4, v9")
        a("v_lshl_add_u32 v9, v1, 7, v9")
        a(f"v_add_u32 v{XA+ks}, s42, v9")
    a("v_and_b32 v9, 15, v0")
    a("v_lshrrev_b32 v10, 2, v9")
    a("v_lshl_add_u32 v10, v2, 3, v10")
    a("v_lshlrev_b32 v10, 7, v10")
    a("v_bfe_u32 v11, v0, 4, 1")
    a("v_lshlrev_b32 v11, 1, v11")
    a("v_bfe_u32 v12, v0, 1, 1")
    a("v_or_b32 v11, v11, v12")
    a("s_lshl_b32 s42, s41, 2")
    a("v_or_b32 v11, s42, v11")
    a("v_bfe_u32 v12, v0, 3, 1")
    a("v_lshlrev_b32 v12, 2, v12")
    a("v_xor_b32 v11, v11, v12")
    a("v_lshl_add_u32 v10, v11, 4, v10")
    a("v_and_b32 v12, 1, v0")
    a("v_lshl_add_u32 v10, v12, 3, v10")
    a(f"v_add_u32 v{WA}, 0x4000, v10")
    for i in range(96):
        a(f"v_mov_b32 v{ACC+i}, 0")

    def reads(fs, ks):
        f = FR[fs]
        out = []
        for tt in range(2):
            out.append(f"ds_read_b128 {vr(f+4*tt,4)}, v{XA+ks} offset:{tt*4096}")
        for s in range(3):
            for t in range(2):
                out.append(f"ds_read_b64_tr_b16 {vr(f+8+4*s+2*t,2)}, v{WA} offset:{s*8192+ks*2048+t*512}")
        return out
    def mfmas(fs):
        f = FR[fs]
        out = []
        for tt in range(2):
            for s in range(3):
                acc = vr(ACC + (tt*3+s)*16, 16)
                x = vr(f+4*tt, 4); w = vr(f+8+4*s, 4)
                if s < 2:
                    out.append(f"{MFMA} {acc}, {w}, {x}, {acc}")
                else:
                    out.append(f"{MFMA} {acc}, {x}, {w}, {acc}")
        return out
    def advance(c):
        d = K1_SLOT if (c & 3) != 3 else -3 * K1_SLOT
        out = []
        for r in [XA, XA+1, XA+2, XA+3, WA]:
            if d > 0:
                out.append(f"v_add_u32 v{r}, {d}, v{r}")
            else:
                out.append(f"v_subrev_u32 v{r}, {-d}, v{r}")
        return out

    a("s_barrier")
    for l in reads(0, 0):
        a(l)
    a("s_waitcnt lgkmcnt(0)")
    fs = 0
    for c in range(8):
        for ks in range(4):
            last = (c == 7 and ks == 3)
            rd = []
            if ks == 3:
                if not last:
                    a("s_barrier")
                    for l in advance(c):
                        a(l)
                    rd = reads(fs ^ 1, 0)
            else:
                rd = reads(fs ^ 1, ks + 1)
            mf = mfmas(fs)
            for i, m in enumerate(mf):
                a(m)
                for l in rd[2*i:2*i+2]:
                    a(l)
            if not last:
                a("s_waitcnt lgkmcnt(0)")
            fs ^= 1
    a(f"s_lshl_b32 s42, s{BR}, 5")
    a(f"s_lshl_b32 s43, s{HG}, 2")
    a("s_add_u32 s42, s42, s43")
    a("s_lshl_b32 s43, s41, 1")
    a("s_add_u32 s42, s42, s43")
    a(f"s_lshl_b32 s43, s{MT}, 2")
    a("s_lshl_b32 s44, s40, 1")
    a("s_add_u32 s43, s43, s44")
    a("s_lshl_b32 s42, s42, 6")
    a("s_add_u32 s42, s42, s43")
    a("s_lshl_b32 s44, s42, 10")
    a("s_add_u32 s45, s44, 0x10000")
    a("s_lshl_b32 s46, s42, 11")
    a(f"s_add_u32 s46, s46, {hex(KV_OFF)}")
    a("s_add_u32 s47, s46, 0x20000")
    a(f"s_mov_b32 s48, {hex(f32(QSCALE))}")
    a("v_lshlrev_b32 v4, 4, v0")
    a("v_and_b32 v5, 0x33, v0")
    a("v_bfe_u32 v6, v0, 2, 1")
    a("v_lshl_or_b32 v5, v6, 3, v5")
    a("v_bfe_u32 v6, v0, 3, 1")
    a("v_lshl_or_b32 v5, v6, 2, v5")
    a("v_lshlrev_b32 v5, 4, v5")
    a("v_and_b32 v6, 0x2f, v0")
    a("v_lshlrev_b32 v6, 4, v6")
    a("v_bfe_u32 v7, v0, 4, 1")
    a("v_lshl_add_u32 v6, v7, 17, v6")
    a("s_nop 4")
    tmp = [16, 24, 32, 40, 48, 56]
    for tt in range(2):
        for s in range(3):
            acc = ACC + (tt*3+s)*16
            t = tmp[tt*3+s]
            if s == 0:
                for i in range(16):
                    a(f"v_mul_f32 v{acc+i}, s48, v{acc+i}")
            for i in range(8):
                a(f"v_cvt_pk_bf16_f32 v{t+i}, v{acc+2*i}, v{acc+2*i+1}")
            if s == 0:
                a(f"buffer_store_dwordx4 {vr(t,4)}, v4, s[36:39], s44 offen offset:{tt*1024}")
                a(f"buffer_store_dwordx4 {vr(t+4,4)}, v4, s[36:39], s45 offen offset:{tt*1024}")
            elif s == 1:
                a(f"buffer_store_dwordx4 {vr(t,4)}, v5, s[36:39], s46 offen offset:{tt*2048}")
                a(f"buffer_store_dwordx4 {vr(t+4,4)}, v5, s[36:39], s47 offen offset:{tt*2048}")
            else:
                a(f"buffer_store_dwordx4 {vr(t,4)}, v6, s[36:39], s46 offen offset:{tt*2048+1024}")
                a(f"buffer_store_dwordx4 {vr(t+4,4)}, v6, s[36:39], s46 offen offset:{tt*2048+1024+256}")
    a("K1_END:")
    a("s_endpgm")
    return L, 160, K1_LDS, 512

K2_LDS = 163840
A_LDS = 131072
NEG_INF = 0xff800000

def gen_k2(a, cfg):
    L = "attn_kernel"
    kernel_head(a, L)
    QA, QB = 4, 8
    KD, KB0 = 12, 16
    IDX = 20
    ADR = 21
    ADA = 22
    GV = 23
    KBUF = [24, 28]
    V0B = [32, 36]
    V1B = [40, 44]
    CA, CB, CX = 48, 64, 80
    S = [96, 112]
    OA, OB = 128, 144
    T = 160
    NV = 192
    a("s_cmp_ge_u32 s2, 256")
    a("s_cbranch_scc1 K2_END")
    a("s_load_dwordx2 s[10:11], s[0:1], 72")
    a("v_lshrrev_b32 v1, 6, v0")
    a("v_and_b32 v0, 63, v0")
    a("s_and_b32 s20, s2, 7")
    a("s_lshr_b32 s21, s2, 3")
    a("v_readfirstlane_b32 s18, v1")
    a("s_lshl_b32 s22, s20, 2")
    a("s_and_b32 s23, s21, 3")
    a("s_add_u32 s22, s22, s23")
    a("s_lshr_b32 s23, s21, 2")
    a("s_lshl_b32 s24, s23, 3")
    a("s_add_u32 s24, s24, s18")
    HEAD, QR, QT, WV = 22, 23, 24, 18
    a("v_lshlrev_b32 v2, 4, v0")
    a("s_waitcnt lgkmcnt(0)")
    srd(a, 28, 10, WS_BYTES)
    a(f"s_lshl_b32 s40, s{HEAD}, 17")
    a(f"s_add_u32 s40, s40, {hex(KV_OFF)}")
    a("s_add_u32 s41, s40, 0x400000")
    a(f"s_lshl_b32 s42, s{HEAD}, 6")
    a(f"s_add_u32 s42, s42, s{QT}")
    a("s_lshl_b32 s42, s42, 10")
    a("s_add_u32 s43, s42, 0x200000")
    a(f"s_lshl_b32 s44, s{QT}, 11")
    a("s_add_u32 s44, s44, s40")
    a(f"buffer_load_dwordx4 {vr(QA,4)}, v2, s[28:31], s42 offen")
    a(f"buffer_load_dwordx4 {vr(KD,4)}, v2, s[28:31], s44 offen")
    a(f"buffer_load_dwordx4 {vr(QB,4)}, v2, s[28:31], s43 offen")
    a(f"buffer_load_dwordx4 {vr(KB0,4)}, v2, s[28:31], s41 offen")
    a(f"s_lshl_b32 s45, s{QR}, 3")
    a(f"s_lshl_b32 s46, s{WV}, 1")
    a("s_add_u32 s45, s45, s46")
    a("s_sub_i32 s45, s45, 8")
    a("s_max_i32 s45, s45, 0")
    a("s_lshl_b32 s45, s45, 11")
    a("s_add_u32 s45, s45, s40")
    a(f"s_lshl_b32 s46, s{WV}, 12")
    a(f"s_add_u32 m0, s46, {A_LDS}")
    a("s_nop 0")
    for i in range(4):
        a(f"buffer_load_dwordx4 v2, s[28:31], s45 offen offset:{i*1024} lds")
    a("v_and_b32 v3, 31, v0")
    a("v_lshlrev_b32 v3, 2, v3")
    a(f"s_lshl_b32 s47, s{QT}, 7")
    a(f"s_add_u32 s47, s47, {hex(G_OFF)}")
    a(f"buffer_load_dword v{GV}, v3, s[28:31], s47 offen")
    a("s_add_u32 s45, s41, s46")
    for i in range(4):
        a(f"s_add_u32 m0, s46, {i*32768}")
        a("s_nop 0")
        for v in range(4):
            a(f"buffer_load_dwordx4 v2, s[28:31], s45 offen offset:{v*1024} lds")
        if i < 3:
            a("s_add_u32 s45, s45, 32768")
    a(f"v_mov_b32 v{IDX}, 0xdddddddd")
    a(f"v_mov_b32 v{ADR}, v2")
    a(f"s_lshl_b32 s46, s{WV}, 11")
    a(f"s_add_u32 s46, s46, {A_LDS}")
    a(f"v_add_u32 v{ADA}, s46, v2")
    a("v_and_b32 v3, 0x1b, v0")
    a("v_cmp_eq_u32 vcc, 16, v3")
    a("v_mov_b32 v1, 0x3f803f80")
    a("s_nop 0")
    a("v_cndmask_b32 v1, 0, v1, vcc")
    for b in V0B + V1B:
        for i in range(4):
            a(f"v_mov_b32 v{b+i}, v1")
    a("s_mov_b32 s50, 0xffff")
    a("s_mov_b32 s51, 0xffff")
    for i in range(16):
        a(f"v_mov_b32 v{OA+i}, 0")
        a(f"v_mov_b32 v{OB+i}, 0")
    a("v_and_b32 v3, 31, v0")
    a("v_lshrrev_b32 v1, 5, v0")
    a("v_lshlrev_b32 v1, 3, v1")
    a("v_sub_u32 v3, v3, v1")
    a(f"v_mov_b32 v1, {hex(NEG_INF)}")
    for r in range(16):
        kk = 16 * (r >> 3) + (r & 7)
        a(f"v_cmp_le_i32 {sr(64+2*r,2)}, {kk}, v3")
    a("s_nop 1")
    for r in range(16):
        a(f"v_cndmask_b32 v{CX+r}, v1, 0, {sr(64+2*r,2)}")

    def rowmax(src, dst, tmp):
        a(f"v_max3_f32 v{dst}, v{src}, v{src+1}, v{src+2}")
        for i in range(3, 15, 2):
            a(f"v_max3_f32 v{dst}, v{dst}, v{src+i}, v{src+i+1}")
        a(f"v_max_f32 v{dst}, v{dst}, v{src+15}")
        a(f"v_mov_b32 v{tmp}, v{dst}")
        a("s_nop 1")
        a(f"v_permlane32_swap_b32 v{dst}, v{tmp}")
        a("s_nop 1")
        a(f"v_max_f32 v{dst}, v{dst}, v{tmp}")

    a("s_waitcnt vmcnt(21)")
    a(f"{MFMA} {vr(S[0],16)}, {vr(KD,4)}, {vr(QA,4)}, {vr(CX,16)}")
    a(f"{MFMA} {vr(S[1],16)}, {vr(KB0,4)}, {vr(QB,4)}, 0")
    a("s_nop 11")
    rowmax(S[0], T, T+1)
    rowmax(S[1], T+2, T+3)
    for r in range(16):
        a(f"v_sub_f32 v{CA+r}, 0, v{T}")
        a(f"v_sub_f32 v{CB+r}, 0, v{T+2}")
    for r in range(16):
        a(f"v_sub_f32 v{S[0]+r}, v{S[0]+r}, v{T}")
    a("s_waitcnt vmcnt(16)")
    a("s_barrier")

    def koff(t):
        if t < 9:
            return ADA, (8 - t) * 2048
        return ADR, (t - 9) * 2048
    def rdK(t, base=0):
        r, o = koff(t)
        return f"ds_read_b128 {vr(KBUF[t&1],4)}, v{r} offset:{o-base}"
    def rdV(t, g, base=0):
        r, o = koff(t)
        b = (V0B if g == 0 else V1B)[t & 1]
        return f"ds_read_b128 {vr(b,4)}, v{r} offset:{o-base+1024+256*g}"
    def Qof(t): return QA if t < 9 else QB
    def Cof(t): return CX if t == 8 else (CA if t < 9 else CB)
    def Oof(t): return OA if t < 9 else OB

    def block(t, first=False, last=False):
        s = S[t & 1]
        e = [f"v_exp_f32 v{s+i}, v{s+i}" for i in range(16)]
        a(e[0])
        a("s_setprio 1")
        for l in e[1:4]: a(l)
        if not first:
            sp = S[(t-1) & 1]
            a(f"{SMFMAC} {vr(Oof(t-1),16)}, {vr(V1B[(t-1)&1],4)}, {vr(sp+8,8)}, v{IDX}")
        for l in e[4:8]: a(l)
        if not last:
            a(f"{MFMA} {vr(S[(t+1)&1],16)}, {vr(KBUF[(t+1)&1],4)}, {vr(Qof(t+1),4)}, {vr(Cof(t+1),16)}")
        for l in e[8:12]: a(l)
        a(f"{SMFMAC} {vr(Oof(t),16)}, {vr(V0B[t&1],4)}, {vr(s,8)}, v{IDX}")
        for l in e[12:15]: a(l)
        a("s_setprio 0")
        a(e[15])
    def tail(t, base=0, extra=None):
        a(rdK(t+3, base))
        a("s_mov_b64 exec, s[50:51]")
        a(rdV(t+1, 1, base))
        a(rdV(t+2, 0, base))
        a("s_mov_b64 exec, -1")
        if extra:
            for l in extra: a(l)
        a("s_waitcnt lgkmcnt(3)")

    a(rdK(1))
    a("s_mov_b64 exec, s[50:51]")
    a(rdV(0, 0))
    a("s_mov_b64 exec, -1")
    def cfix(u):
        a(f"s_cmp_eq_u32 s{QT}, {u-1}")
        a(f"s_cbranch_scc0 K2_CF{u}")
        a("s_nop 7")
        for r in range(16):
            a(f"v_mov_b32 v{CA+r}, {hex(NEG_INF)}")
        a(f"K2_CF{u}:")
    cfix(1)
    tail(-1)
    for t in range(9):
        block(t, first=(t == 0))
        if t == 6:
            a("s_waitcnt vmcnt(0)")
            a("s_barrier")
        if t + 2 <= 8:
            cfix(t + 2)
        if t == 6:
            a(f"v_mov_b32 v1, {hex(NEG_INF)}")
            for r in range(16):
                a(f"v_cndmask_b32 v{CX+r}, v{CA+r}, v1, {sr(64+2*r,2)}")
        tail(t)
    for t in range(9, 17):
        block(t)
        tail(t)
    a("s_mov_b32 s52, 7")
    a("K2_BLOOP:")
    for t in range(17, 25):
        block(t)
        if t < 24:
            tail(t)
        else:
            tail(t, extra=[f"v_add_u32 v{ADR}, 0x4000, v{ADR}", "s_sub_u32 s52, s52, 1", "s_cmp_lg_u32 s52, 0"])
    a("s_cbranch_scc1 K2_BLOOP")
    a(f"{SMFMAC} {vr(OB,16)}, {vr(V1B[0],4)}, {vr(S[0]+8,8)}, v{IDX}")
    a("s_waitcnt lgkmcnt(0)")

    def check(O, lab):
        a(f"v_add_f32 v{T}, abs(v{O}), abs(v{O+1})")
        for i in range(2, 8):
            a(f"v_add_f32 v{T}, v{T}, abs(v{O+i})")
        a(f"s_mov_b32 s53, {hex(f32(2.0**40))}")
        a(f"v_cmp_nlt_f32 vcc, v{O+8}, s53") if False else None
        a(f"v_cmp_ngt_f32 vcc, s53, v{O+8}")
        a("s_mov_b32 s53, 0x7f000000")
        a(f"v_cmp_ngt_f32 s[54:55], s53, v{T}")
        a("s_nop 1")
        a("s_or_b64 vcc, vcc, s[54:55]")
        if cfg.get("force_fallback"):
            a("s_mov_b64 vcc, -1")
        a(f"s_cbranch_vccz {lab}")

    def slow(br):
        Q = QA if br == 0 else QB
        O = OA if br == 0 else OB
        tag = f"K2_SLOW{br}"
        M = T + 4
        AD = T + 5
        C = CX
        step = -2048 if br == 0 else 2048
        def setup():
            if br == 0:
                a(f"v_add_u32 v{AD}, {8*2048}, v{ADA}")
                a(f"s_min_u32 s56, s{QT}, 8")
                a("s_add_u32 s56, s56, 1")
            else:
                a(f"v_lshlrev_b32 v{AD}, 4, v0")
                a("s_mov_b32 s56, 64")
            a("s_mov_b32 s57, 0")
        def bias(basereg):
            if br == 0:
                a("s_cmp_lg_u32 s57, 8")
                a("s_cselect_b64 s[58:59], -1, 0")
                a("s_cmp_lg_u32 s57, 0")
                a("s_cselect_b64 s[60:61], -1, 0")
                for r in range(16):
                    a(f"s_and_b64 s[62:63], {sr(64+2*r,2)}, s[58:59]")
                    a(f"s_andn2_b64 vcc, s[60:61], {sr(64+2*r,2)}")
                    a("s_or_b64 vcc, vcc, s[62:63]")
                    a(f"v_cndmask_b32 v{C+r}, v1, v{basereg}, vcc")
            else:
                for r in range(16):
                    a(f"v_mov_b32 v{C+r}, v{basereg}")
        def nxt(lab):
            if step > 0:
                a(f"v_add_u32 v{AD}, {step}, v{AD}")
            else:
                a(f"v_subrev_u32 v{AD}, {-step}, v{AD}")
            a("s_add_u32 s57, s57, 1")
            a("s_cmp_lt_u32 s57, s56")
            a(f"s_cbranch_scc1 {lab}")
        a(f"v_mov_b32 v1, {hex(NEG_INF)}")
        a(f"v_mov_b32 v{M}, v1")
        a(f"v_mov_b32 v{T+6}, 0")
        setup()
        a(f"{tag}_P1:")
        a(f"ds_read_b128 {vr(KBUF[0],4)}, v{AD}")
        bias(T + 6)
        a("s_waitcnt lgkmcnt(0)")
        a("s_nop 1")
        a(f"{MFMA} {vr(S[0],16)}, {vr(KBUF[0],4)}, {vr(Q,4)}, {vr(C,16)}")
        a("s_nop 15")
        for i in range(0, 16, 2):
            a(f"v_max3_f32 v{M}, v{M}, v{S[0]+i}, v{S[0]+i+1}")
        nxt(f"{tag}_P1")
        a(f"v_mov_b32 v{T+7}, v{M}")
        a("s_nop 1")
        a(f"v_permlane32_swap_b32 v{M}, v{T+7}")
        a("s_nop 1")
        a(f"v_max_f32 v{M}, v{M}, v{T+7}")
        a(f"v_sub_f32 v{T+6}, 0, v{M}")
        for i in range(16):
            a(f"v_mov_b32 v{O+i}, 0")
        setup()
        a(f"{tag}_P2:")
        a(f"ds_read_b128 {vr(KBUF[0],4)}, v{AD}")
        a("s_mov_b64 exec, s[50:51]")
        a(f"ds_read_b128 {vr(V0B[0],4)}, v{AD} offset:1024")
        a(f"ds_read_b128 {vr(V1B[0],4)}, v{AD} offset:1280")
        a("s_mov_b64 exec, -1")
        bias(T + 6)
        a("s_waitcnt lgkmcnt(0)")
        a("s_nop 1")
        a(f"{MFMA} {vr(S[0],16)}, {vr(KBUF[0],4)}, {vr(Q,4)}, {vr(C,16)}")
        a("s_nop 15")
        for i in range(16):
            a(f"v_exp_f32 v{S[0]+i}, v{S[0]+i}")
        a("s_nop 2")
        a(f"{SMFMAC} {vr(O,16)}, {vr(V0B[0],4)}, {vr(S[0],8)}, v{IDX}")
        a(f"{SMFMAC} {vr(O,16)}, {vr(V1B[0],4)}, {vr(S[0]+8,8)}, v{IDX}")
        a("s_nop 7")
        nxt(f"{tag}_P2")
        a("s_nop 15")

    def finish(O, gexpr_lines, breg):
        a(f"v_rcp_f32 v{T}, v{O+8}")
        for l in gexpr_lines: a(l)
        a("s_nop 0")
        a(f"v_mul_f32 v{T}, v{T}, v{T+1}")
        for i in range(8):
            a(f"v_mul_f32 v{O+i}, v{O+i}, v{T}")
        for i in range(4):
            a(f"v_cvt_pk_bf16_f32 v{O+12+i}, v{O+2*i}, v{O+2*i+1}")
        a(f"buffer_store_dwordx4 {vr(O+12,4)}, v2, s[28:31], s{breg} offen")

    a(f"s_lshl_b32 s40, s{QT}, 6")
    a(f"s_add_u32 s40, s40, s{HEAD}")
    a("s_lshl_b32 s40, s40, 10")
    a(f"s_add_u32 s40, s40, {hex(OF_OFF)}")
    a("s_add_u32 s41, s40, 0x8000")
    check(OA, "K2_OKA")
    slow(0)
    a("K2_OKA:")
    finish(OA, [f"v_mov_b32 v{T+1}, v{GV}"], 40)
    check(OB, "K2_OKB")
    slow(1)
    a("K2_OKB:")
    finish(OB, [f"v_sub_f32 v{T+1}, 1.0, v{GV}"], 41)
    a("K2_END:")
    a("s_endpgm")
    return L, NV, K2_LDS, 512

def gen_k3(a, cfg):
    L = "oproj_kernel"
    kernel_head(a, L)
    a("s_cmp_ge_u32 s2, 256")
    a("s_cbranch_scc1 K3_END")
    a("s_load_dwordx2 s[10:11], s[0:1], 72")
    a("s_load_dwordx2 s[12:13], s[0:1], 56")
    a("v_lshrrev_b32 v1, 6, v0")
    a("v_and_b32 v0, 63, v0")
    a("s_and_b32 s20, s2, 7")
    a("s_lshr_b32 s21, s2, 3")
    a("v_readfirstlane_b32 s18, v1")
    a("s_lshl_b32 s22, s20, 2")
    a("s_and_b32 s23, s21, 3")
    a("s_add_u32 s22, s22, s23")
    a("s_lshr_b32 s23, s21, 2")
    a("v_lshlrev_b32 v2, 4, v0")
    a("s_lshr_b32 s24, s18, 1")
    a("s_and_b32 s25, s18, 1")
    a("s_lshl_b32 s26, s18, 14")
    a("s_lshl_b32 s40, s22, 1")
    a("s_add_u32 s41, s40, s24")
    a("s_xor_b32 s42, s41, 1")
    a("s_lshl_b32 s41, s41, 16")
    a("s_lshl_b32 s42, s42, 16")
    a("s_add_u32 s41, s41, s26")
    a("s_add_u32 s42, s42, s26")
    a(f"s_add_u32 s41, s41, {hex(OF_OFF)}")
    a(f"s_add_u32 s42, s42, {hex(OF_OFF)}")
    a("s_lshl_b32 s40, s23, 1")
    a("s_add_u32 s43, s40, s25")
    a("s_xor_b32 s44, s43, 1")
    a("s_lshl_b32 s43, s43, 16")
    a("s_lshl_b32 s44, s44, 16")
    a("s_add_u32 s43, s43, s26")
    a("s_add_u32 s44, s44, s26")
    a(f"s_add_u32 s43, s43, {hex(WO_OFF)}")
    a(f"s_add_u32 s44, s44, {hex(WO_OFF)}")
    a("s_waitcnt lgkmcnt(0)")
    srd(a, 28, 10, WS_BYTES)
    srd(a, 32, 12, 2048 * 512 * 2)
    ACC = 16
    def ar(b, n): return f"a[{b}:{b+n-1}]"
    def loads(ks):
        for st, sreg in enumerate((41, 42, 43, 44)):
            a(f"buffer_load_dwordx4 {ar(ks*16+4*st,4)}, v2, s[28:31], s{sreg} offen offset:{(ks&3)*1024}")
        if (ks & 3) == 3 and ks < 15:
            for sreg in (41, 42, 43, 44):
                a(f"s_add_u32 s{sreg}, s{sreg}, 4096")
    for ks in range(15):
        loads(ks)
    for i in range(64):
        a(f"v_mov_b32 v{ACC+i}, 0")
    for ks in range(16):
        if ks == 0:
            a("s_waitcnt vmcnt(56)")
        else:
            a(f"s_waitcnt vmcnt({(15-ks)*4})")
        for aq in range(2):
            for bn in range(2):
                acc = vr(ACC + (aq*2+bn)*16, 16)
                a(f"{MFMA} {acc}, {ar(ks*16+8+4*bn,4)}, {ar(ks*16+4*aq,4)}, {acc}")
        if ks == 0:
            loads(15)
    for u in range(1, 4):
        a(f"s_xor_b32 s45, s18, {u}")
        a("s_mul_i32 s45, s45, 12288")
        a(f"s_add_u32 s45, s45, {(u-1)*4096}")
        a(f"v_add_u32 v{3+u}, s45, v2")
    a("s_mul_i32 s45, s18, 12288")
    a("v_add_u32 v3, s45, v2")
    a("s_nop 7")
    for u in range(1, 4):
        for r in range(4):
            a(f"ds_write_b128 v{3+u}, {vr(ACC+u*16+4*r,4)} offset:{r*1024}")
    a("s_waitcnt lgkmcnt(0)")
    a("s_barrier")
    for u in range(1, 4):
        for r in range(4):
            a(f"ds_read_b128 {vr(ACC+u*16+4*r,4)}, v3 offset:{(u-1)*4096+r*1024}")
    a("v_and_b32 v8, 31, v0")
    a("v_lshlrev_b32 v8, 10, v8")
    a("v_lshrrev_b32 v9, 5, v0")
    a("v_lshl_add_u32 v8, v9, 4, v8")
    a("s_lshl_b32 s45, s22, 16")
    a("s_lshl_b32 s46, s24, 15")
    a("s_add_u32 s45, s45, s46")
    a("s_lshl_b32 s46, s23, 7")
    a("s_add_u32 s45, s45, s46")
    a("s_lshl_b32 s46, s25, 6")
    a("s_add_u32 s45, s45, s46")
    for u in range(1, 4):
        a(f"s_waitcnt lgkmcnt({(3-u)*4})")
        for i in range(16):
            a(f"v_add_f32 v{ACC+i}, v{ACC+i}, v{ACC+u*16+i}")
    P = ACC + 16
    for i in range(8):
        a(f"v_cvt_pk_bf16_f32 v{P+i}, v{ACC+2*i}, v{ACC+2*i+1}")
    a("s_nop 1")
    for p in range(2):
        a(f"v_permlane32_swap_b32 v{P+4*p}, v{P+4*p+2}")
        a(f"v_permlane32_swap_b32 v{P+4*p+1}, v{P+4*p+3}")
    a("s_nop 1")
    for p in range(2):
        a(f"buffer_store_dwordx4 {vr(P+4*p,4)}, v8, s[32:35], s45 offen offset:{p*32}")
    a("K3_END:")
    a("s_endpgm")
    return L, 80 + 256, 49152, 256, 80

HEADER = open("cdna_kernels/" + NAME + ".s.ref").read().split("; Override launch")[0]

def generate(cfg):
    a = Asm()
    ks = []
    ks.append(gen_k1(a, cfg))
    ks.append(gen_k2(a, cfg))
    ks.append(gen_k3(a, cfg))
    out = HEADER
    for k in ks:
        out += f"; @launch kernel={k[0]} grid=(256,1,1) block=({k[3]},1,1) lds={k[2]}\n"
    out += '.amdgcn_target "amdgcn-amd-amdhsa--gfx950"\n.text\n'
    out += a.text()
    out += '.section .rodata,"a"\n'
    for k in ks:
        out += ".p2align 6\n" + descriptor(k[0], k[1], acc=(k[4] if len(k) > 4 else None))
    return out

if __name__ == "__main__":
    cfg = {}
    outp = "cdna_kernels/" + NAME + ".s"
    for arg in sys.argv[1:]:
        if "=" in arg:
            k, v = arg.split("=")
            cfg[k] = int(v)
        else:
            outp = arg
    open(outp, "w").write(generate(cfg))
    print("wrote", outp)
```

```python
import sys, re
NAME = "gated_mix__sliding_block__softmax_full_mha__prompt"
src, out, k, A = sys.argv[1], sys.argv[2], int(sys.argv[3]), int(sys.argv[4])
lo, hi = (int(sys.argv[5]), int(sys.argv[6])) if len(sys.argv) > 6 else (0, 8)
s = open(src).read()
s = re.sub(r"; @launch grid=\(256,1,1\) block=\(512,1,1\) lds=(\d+)\n",
           lambda m: f"; @launch kernel={NAME}_kernel grid=(256,1,1) block=(512,1,1) lds={m.group(1)}\n; @launch kernel=amp_kernel grid=(1,1,1) block=(64,1,1) lds=0\n", s)
amp = f"""
.globl amp_kernel
.p2align 8
.type amp_kernel,@function
amp_kernel:
    s_cmp_ge_u32 s2, 1
    s_cbranch_scc1 AMP_END
    s_load_dwordx2 s[4:5], s[0:1], 72
    s_waitcnt lgkmcnt(0)
    s_mov_b32 s6, {24 << 20}
    s_mov_b32 s7, 0x20000
    v_lshlrev_b32 v1, 7, v0
    v_mov_b32 v2, 0
    v_mov_b32 v3, -1
    s_mov_b32 s8, {20 << 20}
    s_mov_b32 s9, 32
    v_and_b32 v6, 7, v0
    v_cmp_le_u32 vcc, {lo}, v6
    s_mov_b64 s[12:13], vcc
    v_cmp_gt_u32 vcc, {hi}, v6
    s_and_b64 s[12:13], s[12:13], vcc
AMP_L:
    buffer_load_dword v4, v1, s[4:7], s8 offen offset:{(2*k+1)*4}
    buffer_load_dword v5, v1, s[4:7], s8 offen offset:4
    s_waitcnt vmcnt(0)
    v_cndmask_b32 v4, 0, v4, s[12:13]
    v_max_u32 v2, v2, v4
    v_min_u32 v3, v3, v5
    s_add_u32 s8, s8, 8192
    s_sub_u32 s9, s9, 1
    s_cmp_lg_u32 s9, 0
    s_cbranch_scc1 AMP_L
    s_mov_b32 s10, 0
    s_mov_b32 s11, -1
    s_mov_b32 s9, 0
AMP_R:
    v_readlane_b32 s14, v2, s9
    v_readlane_b32 s15, v3, s9
    s_max_u32 s10, s10, s14
    s_min_u32 s11, s11, s15
    s_add_u32 s9, s9, 1
    s_cmp_lt_u32 s9, 64
    s_cbranch_scc1 AMP_R
    s_sub_u32 s10, s10, s11
    s_min_u32 s10, s10, 20000
    s_mul_i32 s10, s10, {A}
    s_memrealtime s[16:17]
    s_waitcnt lgkmcnt(0)
AMP_S:
    s_memrealtime s[18:19]
    s_waitcnt lgkmcnt(0)
    s_sub_u32 s18, s18, s16
    s_cmp_lt_u32 s18, s10
    s_cbranch_scc1 AMP_S
AMP_END:
    s_endpgm
"""
s = s.replace('.section .rodata,"a"', amp + '.section .rodata,"a"')
s += """.p2align 6
.amdhsa_kernel amp_kernel
  .amdhsa_next_free_vgpr 8
  .amdhsa_next_free_sgpr 32
  .amdhsa_accum_offset 8
  .amdhsa_group_segment_fixed_size 0
  .amdhsa_kernarg_size 80
  .amdhsa_user_sgpr_count 2
  .amdhsa_user_sgpr_kernarg_segment_ptr 1
  .amdhsa_system_sgpr_workgroup_id_x 1
.end_amdhsa_kernel
"""
open(out, "w").write(s)
```

```python
import sys, math, struct

NAME = "gated_mix__sliding_block__softmax_full_mha__prompt"
KNAME = NAME + "_kernel"

QF_OFF = 0
KV_OFF = 4 << 20
OF_OFF = 12 << 20
G_OFF = 16 << 20
FP_OFF = (16 << 20) + (512 << 10)
FO_OFF = (16 << 20) + (1024 << 10)
STAMP_OFF = 20 << 20
WS_BYTES = 24 << 20
FSTR = 32

QSCALE = 0.25 * math.log2(math.e)
NEG_INF = 0xff800000
SPIN_MAX = 20000

def f32(x):
    return struct.unpack("<I", struct.pack("<f", x))[0]

class Asm:
    def __init__(self):
        self.lines = []
        self.uid = 0
    def __call__(self, s):
        if isinstance(s, (list, tuple)):
            for x in s:
                if callable(x): x()
                else: self(x)
            return
        for l in s.split("\n"):
            l = l.strip()
            if not l:
                continue
            self.lines.append(l if (l.endswith(":") or l.startswith(".")) else "    " + l)
    def label(self, base):
        self.uid += 1
        return f"L{base}_{self.uid}"
    def text(self):
        return "\n".join(self.lines) + "\n"

def vr(b, n): return f"v[{b}:{b+n-1}]" if n > 1 else f"v{b}"
def sr(b, n): return f"s[{b}:{b+n-1}]" if n > 1 else f"s{b}"
def S4(b): return f"s[{b}:{b+3}]"
def U(n): return n * 8192

MFMA = "v_mfma_f32_32x32x16_bf16"
SMFMAC = "v_smfmac_f32_32x32x32_bf16"

WV, MT, HG, HALF, ROT, HEAD, QR, QT = 3, 4, 5, 6, 7, 8, 9, 10
NON = 12
SX, SWL, SW3, SWS, SOUT, SWOA, SWOB, SGW, SDBG = 16, 20, 28, 32, 36, 40, 44, 48, 52
VMASK = 56
MK = 64
LDS_BYTES = 163840
A_LDS = 131072

class Stamps:
    def __init__(self, a, cfg):
        self.on = cfg.get("stamps", 0); self.a = a; self.dbgA = cfg.get("dbgA", 0); self.amp = cfg.get("amp", 0); self.ampw = cfg.get("ampw", 0)
    def __call__(self, idx, force=False):
        if not self.on: return
        if self.dbgA and 8 <= idx <= 14 and not force: return
        if self.on == 3:
            if idx == 0: self.a("s_memrealtime s[98:99]")
            if idx == 15: self.a(["v_writelane_b32 v250, s98, 1", "s_memrealtime s[98:99]", "s_waitcnt lgkmcnt(0)", "v_writelane_b32 v250, s98, 31"])
            return
        self.a(["s_memtime s[96:97]", "s_memrealtime s[98:99]", "s_waitcnt lgkmcnt(0)",
                f"v_writelane_b32 v250, s96, {2*idx}", f"v_writelane_b32 v250, s98, {2*idx+1}"])
    def flush(self):
        if not self.on: return
        a = self.a
        a("s_waitcnt vmcnt(0)")
        self(15)
        a(["s_lshl_b32 s100, s2, 3", f"s_add_u32 s100, s100, s{WV}", "s_lshl_b32 s100, s100, 7",
           f"s_add_u32 s100, s100, {hex(STAMP_OFF)}", "v_lshlrev_b32 v251, 2, v0", "s_mov_b32 exec_hi, 0",
           f"buffer_store_dword v250, v251, {S4(SWS)}, s100 offen"])
        if self.amp:
            k, A = self.amp // 100, self.amp % 100
            if k >= 50:
                pre = [f"v_readlane_b32 s96, v250, {2*(k-50)+1 if k < 90 else 1}", "s_nop 0",
                       f"s_sub_i32 s96, s96, s{NON}" if k < 90 else f"s_sub_i32 s96, s{NON}, s96", "s_max_i32 s96, s96, 0"]
            else:
                pre = [f"v_readlane_b32 s96, v250, {2*k+1}", "v_readlane_b32 s97, v250, 1", "s_sub_u32 s96, s96, s97"]
            a(pre + ["s_min_u32 s96, s96, 20000",
               f"s_mul_i32 s96, s96, {A}", f"s_cmp_lg_u32 s{WV}, {self.ampw}", "s_cselect_b32 s96, 0, s96", "s_memrealtime s[98:99]", "s_waitcnt lgkmcnt(0)", "L_AMP:", "s_sleep 1",
               "s_memrealtime s[100:101]", "s_waitcnt lgkmcnt(0)", "s_sub_u32 s100, s100, s98", "s_cmp_lt_u32 s100, s96", "s_cbranch_scc1 L_AMP"])

def gen(cfg):
    global FSTR
    FSTR = cfg.get('fstr', 128)
    PS = cfg.get('ps', 4)
    a = Asm()
    st = Stamps(a, cfg)
    cold = []

    def slot_u(g): return 4 * (3 - (g & 3))
    w3u = [16, 17, 18, 12, 13, 14, 15, 11]
    GW_LDS = U(19)
    QSTAGE = U(10)
    STG = U(4)
    NPRE = 3

    QA, QB = 4, 8
    PL = 12
    KBUF = [24, 28]
    CA, CB = 32, 48
    S = [64, 88]
    T = 104
    V0B = [120, 124]
    V1B = [128, 132]
    CX = 136
    IDX, ADR, ADA, GV, QST, NI = 152, 153, 154, 155, 156, 157
    OA, OB = 160, 176
    OFB = 192
    OUTA, WOV, F3A, FPA, SYR = 243, 244, 245, 246, 247
    DF, DG, DA, DGA = 224, 240, 241, 242

    chosen = cfg.get("_chosen", {})
    def cand(name):
        if name in chosen:
            return [f"CD_{name}:", f"s_branch SK_{name}", ".p2align 12", f"PG_{name}:", "s_setpc_b64 s[100:101]", f"SK_{name}:"]
        return [f"CD_{name}:"]
    def touch(wreg, prefixes):
        if not cfg.get("stubs", 1): return
        names = [n for n in chosen if any(n.startswith(p) for p in prefixes)] + ["J", "K"]
        for w in range(4):
            mine = names[w::4]
            lb = a.label("tc")
            nslot = 3 if w == 0 else 2
            assert len(mine) <= nslot, names
            calls = [f"s_call_b64 s[100:101], PG_{n}" for n in mine] + ["s_nop 0"] * (nslot - len(mine))
            a([f"s_cmp_lg_u32 s{wreg}, {3 - w}", f"s_cbranch_scc1 {lb}"] + calls + [f"{lb}:"])

    def srd(d, base, nbytes):
        return [f"s_mov_b32 s{d}, s{base}", f"s_mov_b32 s{d+1}, s{base+1}", f"s_mov_b32 s{d+2}, {hex(nbytes)}", f"s_mov_b32 s{d+3}, 0x20000"]
    def common_setup():
        L = [srd(SWS, 82, WS_BYTES), srd(SDBG, 80, 256), srd(SOUT, 78, 2048 * 512 * 2), srd(SWOA, 68, 512 * 512 * 2), srd(SWOB, 74, 512 * 512 * 2)]
        L.append([f"s_lshl_b32 s{HEAD}, s{HG}, 2", "s_bfe_u32 s60, s2, 0x20003", f"s_add_u32 s{HEAD}, s{HEAD}, s60",
                  f"s_lshr_b32 s{QR}, s2, 5", f"s_lshl_b32 s{QT}, s{QR}, 3", f"s_add_u32 s{QT}, s{QT}, s{WV}"])
        return L

    def p2_setup():
        L = []
        L += [(0, [l]) for l in ["v_bfe_u32 v16, v0, 2, 2", "v_lshrrev_b32 v17, 5, v0", "v_lshl_add_u32 v16, v17, 2, v16",
              "v_lshlrev_b32 v16, 7, v16", "v_bfe_u32 v17, v0, 4, 1", "v_lshlrev_b32 v17, 1, v17", "v_bfe_u32 v18, v0, 1, 1",
              "v_or_b32 v17, v17, v18", "v_bfe_u32 v18, v0, 3, 1", "v_lshl_or_b32 v17, v18, 2, v17"]]
        L += [(0, [l]) for l in ["v_lshl_add_u32 v16, v17, 4, v16", "v_and_b32 v18, 1, v0", "v_lshl_add_u32 v16, v18, 3, v16"]]
        L.append((0, [f"s_lshr_b32 s58, s{WV}, 1", "s_lshl_b32 s58, s58, 14", "v_add_u32 v16, s58, v16"]))
        L += [(0, [l]) for l in ["v_xor_b32 v17, 64, v16", "v_add_u32 v18, 0x10000, v16", "v_add_u32 v19, 0x10000, v17"]]
        L.append((0, ["v_lshrrev_b32 v3, 5, v0", "v_mul_u32_u24 v3, 40, v3", "v_sub_u32 v3, v0, v3"]))
        for r in range(16):
            L.append((0, [f"v_cmp_le_i32 {sr(MK+2*r,2)}, {16*(r>>3) + (r&7)}, v3"]))
        L.append((4, ["v_and_b32 v3, 0x1b, v0", "v_cmp_eq_u32 vcc, 16, v3", "v_mov_b32 v3, 0x3f803f80",
                  f"s_mov_b32 s{VMASK}, 0xffff", f"s_mov_b32 s{VMASK+1}, 0xffff",
                  f"v_cndmask_b32 v{V0B[0]}, 0, v3, vcc", f"v_cndmask_b32 v{V0B[0]+1}, 0, v3, vcc"]))
        for i in range(1, 8):
            L.append((4, [f"v_mov_b64 {vr(V0B[0]+2*i,2)}, {vr(V0B[0],2)}"]))
        L.append((10, [f"v_mov_b32 v{NI}, {hex(NEG_INF)}"]))
        for r in range(16):
            L.append((10, [f"v_cndmask_b32 v{CX+r}, v{NI}, 0, {sr(MK+2*r,2)}"]))
        L.append((10, [f"v_mov_b32 v{IDX}, 0xdddddddd"]))
        L.append((10, [f"v_mov_b32 v{ADR}, v2"]))
        L.append((10, [f"s_lshl_b32 s58, s{WV}, 11", f"s_add_u32 s58, s58, {A_LDS}", f"v_add_u32 v{ADA}, s58, v2"]))
        L.append((10, [f"s_lshl_b32 s58, s{WV}, 10", f"s_add_u32 s58, s58, {QSTAGE}", f"v_add_u32 v{QST}, s58, v2"]))
        L.append((10, [f"s_lshl_b32 s58, s{QR}, 1", "v_add_u32 v158, s58, v0"]))
        L.append((10, ["v_and_b32 v158, 15, v158"]))
        L.append((10, [f"s_and_b32 s58, s{WV}, 1", "s_lshl_b32 s58, s58, 6", f"s_lshr_b32 s59, s{WV}, 1", "s_add_u32 s58, s58, s59",
                       "v_lshl_add_u32 v158, v158, 2, s58"]))
        L.append((10, ["v_and_b32 v159, 1, v0"]))
        L.append((10, [f"s_lshl_b32 s58, s{QR}, 3", f"s_lshl_b32 s59, s{WV}, 1", "s_add_u32 s58, s58, s59", "s_sub_i32 s58, s58, 8",
                       "s_max_i32 s58, s58, 0", "s_add_u32 s58, s58, 1024", "v_add_u32 v159, s58, v159"]))
        L.append((10, ["v_bfe_u32 v3, v0, 1, 1"]))
        L.append((10, ["v_lshl_add_u32 v159, v3, 6, v159"]))
        L.append((10, ["v_cmp_gt_u32 vcc, 16, v0", "v_and_b32 v3, 1, v0", "v_mul_u32_u24 v3, 1088, v3", "v_cndmask_b32 v158, v159, v158, vcc"]))
        L.append((10, ["v_bfe_u32 v159, v0, 1, 1", "v_lshl_add_u32 v3, v159, 6, v3"]))
        L.append((10, ["v_cmp_le_u32 vcc, 20, v0", f"s_add_u32 s58, s{QT}, 1024", "v_add_u32 v159, s58, v3", "s_nop 0",
                       "v_cndmask_b32 v158, v158, v159, vcc"]))
        for i in range(16):
            L.append((18, [f"v_mov_b64 {vr(OA+2*i,2)}, 0"]))
        L.append((18, ["v_lshrrev_b32 v159, 3, v0", "v_bfe_u32 v3, v0, 4, 1"]))
        L.append((18, ["v_lshlrev_b32 v3, 2, v3", "v_xor_b32 v3, v3, v0"]))
        L.append((18, ["v_and_b32 v3, 7, v3", "v_lshlrev_b32 v3, 4, v3"]))
        L.append((25, ["v_and_b32 v20, 15, v0", "v_lshrrev_b32 v21, 5, v0", "v_xor_b32 v20, v20, v21"]))
        L.append((25, ["v_and_b32 v21, 31, v0", "v_lshlrev_b32 v21, 8, v21", "v_lshl_add_u32 v20, v20, 4, v21"]))
        L.append((25, [f"s_lshl_b32 s58, s{WV}, 13", "s_add_u32 s58, s58, 0x10000", "v_add_u32 v20, s58, v20"]))
        L.append((25, ["v_lshrrev_b32 v21, 3, v0", f"s_lshl_b32 s58, s{WV}, 3", "v_add_u32 v21, s58, v21"]))
        L.append((25, ["v_and_b32 v22, 7, v0", "v_lshlrev_b32 v22, 1, v22", "v_xor_b32 v22, v22, v21"]))
        L.append((25, ["v_and_b32 v22, 15, v22", "v_lshlrev_b32 v22, 4, v22", "v_lshl_add_u32 v22, v21, 8, v22"]))
        L.append((25, ["v_add_u32 v22, 0x10000, v22", "v_xor_b32 v23, 16, v22"]))
        L.append((31, [f"v_and_b32 v{OUTA}, 7, v0", f"v_lshlrev_b32 v{OUTA}, 4, v{OUTA}", f"v_lshl_add_u32 v{OUTA}, v21, 10, v{OUTA}"]))
        L.append((32, [f"v_bfe_u32 v{SYR}, v0, 2, 1", f"v_lshlrev_b32 v{SYR}, 7, v{SYR}", f"v_and_or_b32 v{SYR}, v0, 3, v{SYR}",
                       f"v_lshlrev_b32 v{SYR}, 2, v{SYR}", f"v_add_u32 v{SYR}, {A_LDS}, v{SYR}"]))
        L.append((32, [f"v_lshl_add_u32 v{WOV}, v159, 10, v3"]))
        L.append((32, [f"v_mul_u32_u24 v{FPA}, {FSTR}, v158"]))
        L.append((32, [f"v_mul_u32_u24 v{F3A}, {FSTR}, v0"]))
        return L

    def poll_check(mask, vdata, again, tag):
        lp = a.label(tag); dn = a.label(tag + "d")
        a([f"s_mov_b64 exec, {hex(mask)}", f"v_cmp_ne_u64 vcc, s[{NON}:{NON+1}], {vr(vdata,2)}", f"s_cbranch_vccnz {lp}", f"{dn}:",
           "s_mov_b64 exec, -1"])
        def slowp():
            l2 = a.label(tag + "r")
            a([f"{lp}:", f"s_mov_b32 s62, {SPIN_MAX}", f"{l2}:"] + again +
              ["s_waitcnt vmcnt(0)", f"v_cmp_ne_u64 vcc, s[{NON}:{NON+1}], {vr(vdata,2)}", "s_sub_u32 s62, s62, 1",
               f"s_cbranch_scc1 {dn}", f"s_cbranch_vccnz {l2}", f"s_branch {dn}"])
        cold.append(slowp)
    def nonce_load(vd, vz):
        a(["s_mov_b64 exec, 1", f"buffer_load_dwordx2 {vr(vd,2)}, v{vz}, {S4(SDBG)}, 0 offen sc1", "s_mov_b64 exec, -1"])
    def nonce_get(vd, vz):
        lp = a.label("np"); dn = a.label("nd")
        a([f"v_readfirstlane_b32 s{NON}, v{vd}", f"v_readfirstlane_b32 s{NON+1}, v{vd+1}", f"s_cmp_eq_u32 s{NON}, 0",
           f"s_cbranch_scc1 {lp}", f"{dn}:"])
        def slowp():
            l2 = a.label("nr")
            a([f"{lp}:", f"s_mov_b32 s62, {SPIN_MAX}", f"{l2}:", "s_sleep 2"])
            nonce_load(vd, vz)
            a(["s_waitcnt vmcnt(0)", f"v_readfirstlane_b32 s{NON}, v{vd}", f"v_readfirstlane_b32 s{NON+1}, v{vd+1}",
               "s_sub_u32 s62, s62, 1", f"s_cbranch_scc1 {dn}", f"s_cmp_eq_u32 s{NON}, 0", f"s_cbranch_scc1 {l2}", f"s_branch {dn}"])
        cold.append(slowp)

    def store_setup(wreg, AS, half=None, ren=None):
        L = store_setup0(wreg, AS, half)
        if ren:
            import re
            L = [[re.sub(r"\bs(16|17|18|19|20)\b", lambda m: f"s{ren[int(m.group(1))]}", l) for l in g] for g in L]
        return L
    def store_setup0(wreg, AS, half=None):
        L = [[f"s_lshl_b32 s16, s{MT}, 2", f"s_add_u32 s16, s16, s{wreg}", f"s_lshl_b32 s17, s{HG}, 8", "s_add_u32 s17, s17, s16"],
             ["s_lshl_b32 s18, s17, 11", f"s_add_u32 s18, s18, {hex(KV_OFF)}", "s_lshl_b32 s19, s17, 10", f"s_xor_b32 s20, s{HALF}, 1"],
             ["s_lshl_b32 s20, s20, 21", "s_add_u32 s19, s19, s20", f"s_lshl_b32 s11, s{HG}, 1", f"s_add_u32 s11, s11, s{HALF}"],
             ["s_lshl_b32 s11, s11, 6", "s_add_u32 s11, s11, s16", f"s_mul_i32 s11, s11, {FSTR}", f"s_add_u32 s11, s11, {hex(FP_OFF)}"]]
        k0 = [[f"v_and_b32 v{AS}, 0x33, v0", "v_bfe_u32 v3, v0, 2, 1"], [f"v_lshl_or_b32 v{AS}, v3, 3, v{AS}", "v_bfe_u32 v3, v0, 3, 1"],
              [f"v_lshl_or_b32 v{AS}, v3, 2, v{AS}", f"v_lshlrev_b32 v{AS}, 4, v{AS}"], ["s_mov_b32 s26, 0x20000", "s_mov_b32 s27, 0x20000"]]
        k1 = [[f"v_and_b32 v{AS}, 0x2f, v0", f"v_lshlrev_b32 v{AS}, 4, v{AS}"], ["v_bfe_u32 v3, v0, 4, 1", f"v_lshl_add_u32 v{AS}, v3, 17, v{AS}"],
              [f"v_add_u32 v{AS}, 1024, v{AS}"], ["s_mov_b32 s26, 256", "s_mov_b32 s27, 0x3ff00"]]
        if half is not None:
            return L + (k0 if half == 0 else k1)
        lb = a.label("sv")
        return L + k0 + [[f"s_cmp_eq_u32 s{HALF}, 0", f"s_cbranch_scc1 {lb}"]] + k1 + [[f"{lb}:"]]

    a([f".globl {KNAME}", ".p2align 12", f".type {KNAME},@function", f"{KNAME}:"])
    a(["s_load_dwordx16 s[64:79], s[0:1], 0", "s_load_dwordx4 s[80:83], s[0:1], 64",
       "v_lshrrev_b32 v1, 6, v0", "s_cmp_ge_u32 s2, 256", "s_cbranch_scc1 L_END",
       f"v_readfirstlane_b32 s{WV}, v1", "v_and_b32 v0, 63, v0",
       f"s_and_b32 s{HG}, s2, 7", f"s_lshr_b32 s{MT}, s2, 4", f"s_bfe_u32 s{HALF}, s2, 0x10003"])
    st(0)
    a([f"s_cmp_ge_u32 s{WV}, 4", "s_cbranch_scc0 L_CONS"])

    LW = 84
    a([f"s_and_b32 s{LW}, s{WV}, 3",
       {1: [f"s_lshl_b32 s60, s{HALF}, 2", f"s_add_u32 s{ROT}, s{MT}, s60", f"s_add_u32 s{ROT}, s{ROT}, s{HG}", f"s_and_b32 s{ROT}, s{ROT}, 7"],
        4: [f"s_add_u32 s{ROT}, s{MT}, s{HG}", f"s_and_b32 s{ROT}, s{ROT}, 7"],
        5: [f"s_and_b32 s{ROT}, s{MT}, 7"],
        6: [f"s_and_b32 s{ROT}, s{MT}, 3", f"s_lshl_b32 s{ROT}, s{ROT}, 1", f"s_add_u32 s{ROT}, s{ROT}, s{HG}", f"s_and_b32 s{ROT}, s{ROT}, 7"],
        }[cfg.get("rot", 1)],
       "v_lshrrev_b32 v1, 3, v0", "v_bfe_u32 v3, v0, 4, 2",
       "v_xor_b32 v4, v0, v3", "v_and_b32 v4, 7, v4", "v_lshlrev_b32 v4, 4, v4",
       "v_lshl_add_u32 v4, v1, 10, v4",
       f"s_lshl_b32 s85, s{MT}, 17", f"s_lshl_b32 s86, s{LW}, 15", "s_add_u32 s85, s85, s86",
       "v_add_u32 v8, s85, v4", "v_xor_b32 v9, 64, v8", "v_add_u32 v9, 7168, v9",
       "v_add_u32 v10, 14336, v8", "v_add_u32 v11, 14336, v9",
       "v_bfe_u32 v3, v0, 4, 1", "v_lshlrev_b32 v3, 2, v3", "v_xor_b32 v3, v0, v3", "v_and_b32 v3, 7, v3", "v_lshlrev_b32 v3, 4, v3",
       "v_mul_u32_u24 v5, 3072, v1", f"s_lshl_b32 s86, s{HG}, 7", "v_add3_u32 v12, v3, v5, s86",
       f"v_add_u32 v13, {8*3072-1024}, v12", f"v_add_u32 v14, {2*(8*3072-1024)}, v12", f"v_add_u32 v15, {3*(8*3072-1024)}, v12",
       f"s_lshl_b32 s88, s{HALF}, 10", "s_add_u32 s88, s88, 1024",
       f"s_and_b32 s86, s{LW}, 1", f"s_mul_i32 s86, s86, {32*3072}",
       f"s_cmp_lt_u32 s{LW}, 2", "s_cselect_b32 s85, s88, 0", "s_add_u32 s85, s85, s86",
       f"s_lshl_b32 s87, s{LW}, 12",
       f"s_lshr_b32 s86, s{LW}, 1", f"s_and_b32 s86, s86, s{HALF}",
       f"s_mov_b32 s{SX+2}, {hex(2048*512*2)}", f"s_mov_b32 s{SX+3}, 0x20000",
       f"s_mov_b32 s{SWL+2}, {hex(512*1536*2)}", f"s_mov_b32 s{SWL+3}, 0x20000",
       f"s_mov_b32 s89, s{ROT}",
       "s_waitcnt lgkmcnt(0)",
       f"s_mov_b32 s{SX}, s64", f"s_mov_b32 s{SX+1}, s65",
       "s_cmp_eq_u32 s86, 0", f"s_cselect_b32 s{SWL}, s72, s66", f"s_cselect_b32 s{SWL+1}, s73, s67"])
    order = []
    def issue_half(h):
        g, w = divmod(h, 2)
        u = U(slot_u(g))
        if w == 0:
            a([f"s_add_u32 m0, s87, {u}", "s_lshl_b32 s90, s89, 7"])
            for v in range(4):
                a(f"buffer_load_dwordx4 v{8+v}, {S4(SX)}, s90 offen offset:{v*1024} lds"); order.append(g)
        else:
            a([f"s_mul_i32 s90, s89, {64*3072}", f"s_add_u32 m0, s87, {u + 16384}", "s_add_u32 s90, s90, s85"])
            for v in range(4):
                a(f"buffer_load_dwordx4 v{12+v}, {S4(SWL)}, s90 offen offset:{v*1024} lds"); order.append(g)
            a(["s_add_u32 s89, s89, 1", "s_and_b32 s89, s89, 7"])
    PLAN = {0: [4, 7, 10, 12, 14, 16, 16], 1: [4, 6, 8, 10, 13, 16, 16], 2: [4, 6, 9, 12, 14, 16, 16], 3: [3, 6, 9, 12, 14, 16, 16],
            4: [5, 8, 10, 12, 14, 16, 16], 5: [2, 5, 8, 11, 14, 16, 16], 6: [4, 6, 8, 10, 12, 14, 16], 7: [6, 8, 10, 12, 14, 16, 16], 8: [5, 7, 9, 11, 13, 15, 16]}[cfg.get("plan", 2)]
    nh = 0
    while nh < PLAN[0]:
        issue_half(nh); nh += 1
    W3S = 6 if PLAN[5] < 16 else 5
    LAS, LZ, LPA = 40, 41, 42
    a("s_branch L_LOAD2")
    a("L_CONS:")
    XA, WL, WA, AS, AF, NV = 4, 8, 10, 12, 13, 20
    WR, ACC, XF = 24, 56, 120
    def code_prefetch(base_expr, per_wg, vt, dst):
        return ["s_getpc_b64 s[86:87]"] + base_expr + [
                f"v_mul_u32_u24 v{vt}, {per_wg // 64}, v0", f"v_add_u32 v{vt}, s88, v{vt}", f"v_min_u32 v{vt}, s89, v{vt}",
                f"v_mov_b32 v{vt+1}, s87", f"v_add_co_u32 v{vt}, vcc, s86, v{vt}", "s_nop 1",
                f"v_addc_co_u32 v{vt+1}, vcc, 0, v{vt+1}, vcc", f"global_load_dword v{dst}, {vr(vt,2)}, off"]
    if cfg.get("prefc", 1):
        a(code_prefetch(["s_lshr_b32 s88, s2, 3", "s_lshl_b32 s88, s88, 2", f"s_add_u32 s88, s88, s{WV}", "s_mul_i32 s88, s88, 384",
                         "s_mov_b32 s89, CODE_LEFT", "s_mov_b64 exec, 7"], 128 * 64, 24, 249))
        a("s_mov_b64 exec, -1")
    KT, SG, XO = 15, 61, 16
    a([f"s_lshr_b32 s{SG}, s{WV}, 1", f"s_and_b32 s{KT}, s{WV}, 1", f"s_lshl_b32 s{KT}, s{KT}, 1", f"s_add_u32 s{KT}, s{KT}, s{SG}",
       "v_and_b32 v1, 31, v0", "v_lshrrev_b32 v25, 5, v0", "v_bfe_u32 v3, v0, 1, 3", "v_xor_b32 v26, v25, v3", "v_lshlrev_b32 v26, 4, v26",
       "v_lshl_add_u32 v26, v1, 7, v26", f"s_lshl_b32 s86, s{KT}, 12", f"s_add_u32 s86, s86, {U(slot_u(0))}",
       f"v_add_u32 v{XA}, s86, v26", f"v_xor_b32 v{XA+1}, 32, v{XA}", f"v_xor_b32 v{XA+2}, 64, v{XA}", f"v_xor_b32 v{XA+3}, 96, v{XA}"] +
      [f"v_xor_b32 v{XO+k}, 0x1000, v{XA+k}" for k in range(4)] +
      ["v_bfe_u32 v26, v0, 2, 2", "v_lshl_add_u32 v26, v25, 3, v26", "v_lshlrev_b32 v26, 7, v26",
       "v_bfe_u32 v27, v0, 4, 1", "v_lshlrev_b32 v27, 1, v27", "v_bfe_u32 v28, v0, 1, 1", "v_or_b32 v27, v27, v28",
       "v_bfe_u32 v28, v0, 3, 1", "v_lshl_or_b32 v27, v28, 2, v27", "v_lshl_add_u32 v26, v27, 4, v26", "v_and_b32 v28, 1, v0",
       f"v_lshl_add_u32 v{WL}, v28, 3, v26", f"v_xor_b32 v{WL+1}, 64, v{WL}",
       f"s_lshl_b32 s86, s{SG}, 13", f"s_add_u32 s86, s86, {U(slot_u(0)+2)}",
       f"v_add_u32 v{WA}, s86, v{WL}", f"v_add_u32 v{WA+1}, s86, v{WL+1}",
       "v_lshlrev_b32 v14, 4, v25", f"v_mov_b32 v{AF}, 0", "s_waitcnt lgkmcnt(0)"])
    a(srd(SDBG, 80, 256))
    if cfg.get("pref", 0):
        a(srd(SW3, 66, 512 * 1536 * 2) + [f"s_lshl_b32 s86, s{MT}, 2", f"s_add_u32 s86, s86, s{WV}", f"s_mul_i32 s86, s86, {8*3072}",
           f"s_lshl_b32 s87, s{HG}, 7", "s_add_u32 s86, s86, s87", f"s_lshl_b32 s87, s{HALF}, 10", "s_add_u32 s86, s86, s87",
           "v_mul_u32_u24 v24, 3072, v0", "s_mov_b64 exec, 0xff", f"buffer_load_dword v248, v24, {S4(SW3)}, s86 offen offset:1024", "s_mov_b64 exec, -1"])
    lab = a.label("nn")
    a([f"s_or_b32 s86, s{WV}, s2", "s_cmp_lg_u32 s86, 0", f"s_cbranch_scc1 {lab}",
       "s_memrealtime s[86:87]", "s_waitcnt lgkmcnt(0)", "s_or_b32 s86, s86, 1", f"v_mov_b32 v{NV}, s86", f"v_mov_b32 v{NV+1}, s87",
       "s_mov_b64 exec, 1", f"buffer_store_dwordx2 {vr(NV,2)}, v{AF}, {S4(SDBG)}, 0 offen sc1", "s_mov_b64 exec, -1", f"{lab}:"])

    touch(WV, ["C", "L", "P"])
    a([f"s_cmp_gt_u32 s{HALF}, s{SG}", "s_cbranch_scc1 L_AN", "s_branch L_AT"])
    a("L_LOAD2:")
    def lsetup(k):
        if k == 0:
            a(srd(SW3, 66, 512 * 1536 * 2) + srd(SGW, 76, 1024))
            for grp in common_setup(): a(grp)
        elif k == 1:
            a([f"v_add_u32 v4, s{ROT}, v1", "v_and_b32 v4, 7, v4", "v_lshlrev_b32 v4, 7, v4", "v_and_b32 v5, 7, v0",
               "v_lshl_add_u32 v4, v5, 4, v4", f"s_mov_b32 m0, {GW_LDS}", "v_lshlrev_b32 v2, 4, v0",
               f"buffer_load_dwordx4 v4, {S4(SGW)}, 0 offen lds"]); order.append(8)
            a([f"v_mov_b32 v{LZ}, 0", f"s_lshl_b32 s90, s{LW}, 13", f"s_add_u32 s90, s90, {STG}", "v_add_u32 v4, s90, v2"])
        elif k == 2:
            for grp in store_setup(LW, LAS, ren={16: 92, 17: 93, 18: 94, 19: 95, 20: 60}): a(grp)
        else:
            a([
               "v_lshrrev_b32 v5, 1, v0", f"s_lshl_b32 s90, s{QR}, 1", "v_add_u32 v5, s90, v5", "v_and_b32 v5, 15, v5",
               f"v_lshl_add_u32 v5, v5, 2, s{LW}", f"v_and_b32 v{LPA}, 1, v0", f"v_lshl_add_u32 v5, v{LPA}, 6, v5",
               f"s_lshl_b32 s90, s{LW}, 1", f"s_lshl_b32 s91, s{QR}, 3", "s_add_u32 s90, s90, s91", f"v_add_u32 v{LPA}, s90, v{LPA}",
               f"v_cmp_gt_u32 vcc, {2*NPRE}, v0", f"v_mov_b32 v{DA}, v2", f"v_mov_b32 v{DGA}, v2",
               f"v_cndmask_b32 v{LPA}, v{LPA}, v5, vcc", f"v_mul_u32_u24 v{LPA}, {FSTR}, v{LPA}"])
    st(1)
    for s in range(8):
        last = max(i for i, tg in enumerate(order) if tg == s)
        assert order.count(s) == 8
        if cfg.get("dbgA") == 2 and s > 0: st(7 + s, True)
        a(f"s_waitcnt vmcnt({len(order) - 1 - last})")
        if cfg.get("dbgA") == 1 and s > 0: st(7 + s, True)
        a("s_barrier")
        if s == 0: st(2)
        while s < 6 and nh < PLAN[s + 1]:
            assert nh // 2 <= s + 3
            issue_half(nh); nh += 1
        if s in (0, 3, 4, 7): lsetup((0, 3, 4, 7).index(s))
        if s == 5:
            nonce_load(6, LZ); order.append(8)
        if s in (W3S, W3S + 1):
            q = s - W3S
            tab = sum(w3u[4*q + k] << (8*k) for k in range(4))
            a([f"s_lshl_b32 s90, s{LW}, 3", f"s_lshr_b32 s91, {hex(tab)}, s90", "s_and_b32 s91, s91, 0xff", "s_lshl_b32 s91, s91, 13",
               f"s_add_u32 s90, s{ROT}, s{LW}", f"s_add_u32 s90, s90, {4*q}", "s_and_b32 s90, s90, 7",
               f"s_mul_i32 s90, s90, {64*3072}", "s_mov_b32 m0, s91", "s_add_u32 s90, s90, s88"])
            for hh in range(2):
                if hh: a(["s_add_u32 m0, s91, 4096", f"s_add_u32 s90, s90, {32*3072}"])
                for v in range(4):
                    a(f"buffer_load_dwordx4 v{12+v}, {S4(SW3)}, s90 offen offset:{v*1024} lds"); order.append(8)
    ps = [g for _, g in p2_setup()]
    is_mask = lambda g: any(("v_cmp_le_i32" in l) or (f"v_cndmask_b32 v" in l and ", 0, s[" in l) or ("v_mul_u32_u24 v3, 40" in l) for l in g)
    ps_mask = [g for g in ps if is_mask(g)]
    for k_, grp in enumerate(g for g in ps if not is_mask(g)):
        a(grp)
        if k_ % 16 == 15: a(cand(f"L{k_}"))
    if not cfg.get("b9", 2): a("s_waitcnt vmcnt(0)")
    if cfg.get("b9", 2) == 2: a("s_waitcnt vmcnt(8)")
    if cfg.get("lprio", 1): a("s_setprio 3")
    a("s_barrier")
    for k in range(8):
        a(f"ds_read_b128 {vr(24+4*k if k < 4 else DF+4*(k-4),4)}, v4 offset:{k*1024}")
    a(["s_add_u32 s21, s94, 0x400000", "s_mov_b32 s19, s95"])
    for k in range(4):
        a([f"s_waitcnt lgkmcnt({7-k})", f"buffer_store_dwordx4 {vr(24+4*k,4)}, v{LAS}, {S4(SWS)}, s21 offen sc1",
           f"s_add_u32 s21, s21, s{26 + (k & 1)}"])
    lb = a.label("q0"); l2 = a.label("q1")
    a(["s_mov_b32 s28, s19", "s_waitcnt lgkmcnt(0)", f"s_cmp_lg_u32 s{HALF}, 0", f"s_cbranch_scc1 {lb}"])
    for k in range(4):
        a([f"buffer_store_dwordx4 {vr(DF+4*k,4)}, v2, {S4(SWS)}, s19 offen sc1", "s_add_u32 s19, s19, 0x10000"])
    if cfg.get("b9", 2):
        a(["s_waitcnt vmcnt(8)", f"s_branch {l2}", f"{lb}:", "s_waitcnt vmcnt(4)", f"{l2}:", "s_barrier"])
    else:
        a(f"{lb}:")
    nonce_get(6, LZ)
    st(3)
    a(["s_mov_b32 s29, 0x10000", "s_mov_b32 s30, 0x10000",
       f"s_add_u32 s31, s11, {2*1024*FSTR}", f"s_mov_b32 s25, s{HALF}",
       f"s_mul_i32 s16, s{HG}, {128*FSTR}", f"s_add_u32 s16, s16, {hex(FP_OFF)}",
       f"s_lshl_b32 s18, s{LW}, 11",
       f"s_lshl_b32 s17, s{HEAD}, 17", f"s_add_u32 s17, s17, {hex(KV_OFF + (4 << 20))}", "s_add_u32 s17, s17, s18",
       f"s_lshl_b32 s20, s{QR}, 3", f"s_lshl_b32 s19, s{HEAD}, 6", "s_add_u32 s19, s19, s20", "s_lshl_b32 s19, s19, 10",
       "s_add_u32 s19, s19, s18", f"s_add_u32 s19, s19, {hex(QF_OFF + (2 << 20))}", f"s_mov_b32 s23, s{LW}"])
    for grp in ps_mask: a(grp)
    gflag = ["s_mov_b64 exec, 1", f"buffer_store_dwordx2 v[6:7], v{LZ}, {S4(SWS)}, s11 offen sc1"]
    a([f"s_add_u32 s21, s11, {3*1024*FSTR}", f"s_add_u32 s22, s16, {3*1024*FSTR}", "s_waitcnt vmcnt(0)", "s_mov_b64 exec, 1",
       f"buffer_store_dwordx2 v[6:7], v{LZ}, {S4(SWS)}, s21 offen"])
    st(5)
    pm = f"s_mov_b64 exec, {hex((1 << (2*NPRE+2)) - 1)}"
    def pq(k): return f"buffer_load_dwordx2 {vr(24+2*k,2)}, v{LPA}, {S4(SWS)}, s22 offen sc1"
    PQ = cfg.get("pq", 2)
    a([pm, f"s_mov_b32 s62, {cfg.get('locn', 8)}", pq(0), f"s_sleep {PQ}", pq(1), f"s_sleep {PQ}", "L_FL:"])
    for k in range(3):
        a([pq((k + 2) % 3), "s_waitcnt vmcnt(2)", f"v_cmp_ne_u64 vcc, s[{NON}:{NON+1}], {vr(24+2*k,2)}", "s_cbranch_vccz L_FLD", f"s_sleep {PQ}"])
    a(["s_sub_u32 s62, s62, 1", "s_cbranch_scc0 L_FL", "s_branch L_FG", "L_FLD:"] + gflag + ["L_F0D:", "s_mov_b64 exec, -1"])
    cold.append(lambda: a(["L_FG:"] + gflag + [pm, f"s_mov_b32 s62, {SPIN_MAX}", "L_FG2:",
                          f"buffer_load_dwordx2 v[24:25], v{LPA}, {S4(SWS)}, s16 offen sc1", "s_waitcnt vmcnt(0)",
                          f"v_cmp_ne_u64 vcc, s[{NON}:{NON+1}], v[24:25]", "s_sub_u32 s62, s62, 1", "s_cbranch_scc1 L_F0D",
                          "s_cbranch_vccz L_F0D", f"s_sleep {PS}", "s_branch L_FG2"]))
    st(4)
    a([f"s_add_u32 m0, s18, {QSTAGE}", f"s_lshl_b32 s22, s{QR}, 14"])
    for v in range(2):
        a(f"buffer_load_dwordx4 v2, {S4(SWS)}, s19 offen offset:{v*1024} sc1 lds")
    for pc in range(NPRE):
        a([f"s_add_u32 m0, s18, {pc*8192}", "s_add_u32 s21, s22, s17"])
        for v in range(2):
            a(f"buffer_load_dwordx4 v2, {S4(SWS)}, s21 offen offset:{v*1024} sc1 lds")
        if pc < NPRE - 1: a(["s_add_u32 s22, s22, 8192", "s_and_b32 s22, s22, 0x1ffff"])
    a(["s_setprio 0", "s_waitcnt vmcnt(0)", "s_branch L_P2"])

    def mm(acc, w, x, swap, first):
        A_ = vr(acc, 16)
        c = "0" if first else A_
        return f"{MFMA} {A_}, {x}, {w}, {c}" if swap else f"{MFMA} {A_}, {w}, {x}, {c}"
    def passA(swap):
        ss = store_setup(KT, AS)
        fillA = common_setup() + [["v_lshlrev_b32 v2, 4, v0"]] + ss[:4] + [sum(ss[4:], [])] + [
            [f"s_lshl_b32 s24, s{HG}, 13", "s_lshl_b32 s25, s16, 7", "s_add_u32 s24, s24, s25", f"s_lshl_b32 s25, s{HALF}, 16",
             "s_add_u32 s24, s24, s25", f"s_add_u32 s24, s24, {hex(G_OFF)}"],
            [f"v_add_u32 v14, {GW_LDS}, v14", f"s_mov_b32 s22, {hex(f32(QSCALE))}", f"s_mov_b32 s23, {hex(f32(QSCALE))}"],
            [f"s_lshl_b32 s21, s{KT}, 1", f"s_add_u32 s21, s21, s{SG}", "s_lshl_b32 s21, s21, 12", f"s_add_u32 s21, s21, {STG}", "v_add_u32 v15, s21, v2"]]
        XT = WR + 16
        def readsA(c, ks):
            i = c*4 + ks
            b = WR + (i & 1) * 8
            tr = [f"ds_read_b64_tr_b16 {vr(b+f*4+t*2,2)}, v{WA+f} offset:{ks*2048+t*512}" for f in range(2) for t in range(2)]
            return [f"ds_read_b128 {vr(XF+i*4,4)}, v{XA+ks}"] + tr + [f"ds_read_b128 {vr(XT+(i&1)*4,4)}, v{XO+ks}"]
        st(1)
        a("s_barrier")
        st(2)
        pend = []
        def emit_rd(l, tag):
            a(l); pend.append(tag)
        def wait_for(step, idx):
            pos = max([k for k, tg in enumerate(pend) if tg <= (step, idx)], default=-1)
            if pos >= 0:
                n = len(pend) - 1 - pos
                assert n <= 15
                a(f"s_waitcnt lgkmcnt({n})")
                del pend[:pos + 1]
        for k, l in enumerate(readsA(0, 0)): emit_rd(l, (0, k))
        for c in range(8):
            for ks in range(4):
                i = c*4 + ks
                bnd = (ks == 3 and c < 7)
                rd = readsA(c + 1, 0) if bnd else (readsA(c, ks + 1) if ks < 3 else [])
                b = WR + (i & 1) * 8
                xs = [vr(XF + i*4, 4), vr(XT + (i & 1)*4, 4)]
                mf = [mm(ACC + o*32 + f*16, vr(b+f*4, 4), xs[o], swap, i == 0) for o in range(2) for f in range(2)]
                cuts = [0, 0, 3, 6, 6] if bnd else [0, 2, 4, 6, 6]
                need = [2, 5 if bnd else 4, 5, 5]
                for k, m in enumerate(mf):
                    wait_for(i, need[k])
                    a(m)
                    if bnd and k == 0:
                        d = U(slot_u(c + 1)) - U(slot_u(c))
                        for r in [XA, XO, WA, WA+1]:
                            a(f"v_add_u32 v{r}, {d}, v{r}" if d > 0 else f"v_subrev_u32 v{r}, {-d}, v{r}")
                    if bnd and k == 1:
                        if cfg.get("dbgA") == 2: st(8 + c, True)
                        a("s_barrier")
                        if cfg.get("dbgA") == 1: st(8 + c, True)
                    for q in range(cuts[k], cuts[k+1]):
                        if q < len(rd): emit_rd(rd[q], (i + 1, q))
                    if bnd and k == 3:
                        for r in [XA+1, XA+2, XA+3, XO+1, XO+2, XO+3]:
                            a(f"v_add_u32 v{r}, {d}, v{r}" if d > 0 else f"v_subrev_u32 v{r}, {-d}, v{r}")
                    if k == 3 and ks < 3 and fillA: a(fillA.pop(0))
                    if k == 3: a(cand(f"C{int(swap)}A{i}"))
        assert not fillA
        st(3)
        a(["v_xor_b32 v16, 0x2000, v15", "s_nop 7"])
        if not swap:
            lb = a.label("ns")
            a([f"s_cmp_eq_u32 s{SG}, 0", f"s_cbranch_scc1 {lb}"] +
              [f"v_pk_mul_f32 {vr(ACC+2*k,2)}, {vr(ACC+2*k,2)}, s[22:23]" for k in range(32)] + [f"{lb}:"])
        else:
            a("s_nop 1")
        for q in range(4):
            t = ACC + 16*q
            for k in range(8):
                a(f"v_cvt_pk_bf16_f32 v{t+k}, v{t+2*k}, v{t+2*k+1}")
                if k in (3, 7):
                    a(f"ds_write_b128 v{15 + (q >> 1)}, {vr(t+k-3,4)} offset:{(2*(q & 1) + (k >> 2))*1024}")
        nonce_load(NV, AF)
        a(["s_waitcnt lgkmcnt(0)", "s_barrier"])
        if cfg.get("b9", 2) == 1: a("s_barrier")
        st(4)
    def consumer(half):
        GR, GACC = 88, 104
        GH = 0 if cfg.get('rot', 1) == 1 else half
        filler2 = p2_setup()
        outstanding = []
        wbase = {"u": None}
        def readsB(i):
            c, ks = divmod(i, 4)
            u = w3u[c]
            out = []
            if wbase["u"] is None or not (0 <= u - wbase["u"] <= 3):
                wbase["u"] = u
                out += [f"v_add_u32 v{WA+f}, {U(u)}, v{WL+f}" for f in range(2)]
            wo = (u - wbase["u"]) * 8192
            for f in range(2):
                for t in range(2):
                    out.append(f"ds_read_b64_tr_b16 {vr(WR+(i%4)*8+f*4+t*2,2)}, v{WA+f} offset:{wo+ks*2048+t*512}")
                    outstanding.append(i)
            if i // 16 == GH:
                out.append(f"ds_read_b128 {vr(GR+(i%4)*4,4)}, v14 offset:{i*32}")
                outstanding.append(i)
            return out
        DB = 3
        for i in range(DB): a(readsB(i))
        for i in range(32):
            n = sum(1 for s_ in outstanding if s_ > i)
            a(f"s_waitcnt lgkmcnt({n})")
            outstanding[:] = [s_ for s_ in outstanding if s_ > i]
            if cfg.get("b9", 2) == 2 and i == 5: a("s_barrier")
            rd = readsB(i + DB) if i + DB < 32 else []
            x = vr(XF + i*4, 4)
            mf = [mm(ACC + f*16, vr(WR+(i%4)*8+f*4, 4), x, half == 1, i == 0) for f in range(2)]
            if i // 16 == GH:
                mf.append(mm(GACC, vr(GR+(i%4)*4, 4), x, False, i % 16 == 0))
            h_ = (len(rd) + 1) // 2
            for f, m in enumerate(mf):
                a(m)
                a(rd[f*h_:(f+1)*h_])
                for _ in range(2):
                    if filler2 and filler2[0][0] <= i:
                        a(filler2.pop(0)[1])
            a(cand(f"C{half}B{i}"))
            if i == 24:
                a("s_waitcnt vmcnt(0)")
                nonce_get(NV, AF)
        for _, grp in filler2: a(grp)
        st(5)
        a([f"v_mov_b32 v{DA}, v{AS}", "s_mov_b32 s28, s18", "s_mov_b32 s29, s26", "s_mov_b32 s30, s27",
           f"s_add_u32 s31, s11, {1024*FSTR}", "s_mov_b32 s25, 2", f"v_lshlrev_b32 v{DGA}, 2, v1",
           "s_nop 4"])
        for k in range(16):
            a(f"v_cvt_pk_bf16_f32 v{DF+k}, v{ACC+2*k}, v{ACC+2*k+1}")
        a(f"v_mov_b32 v{DG}, v{GACC}")
    if cfg.get("stubs", 1): a(".p2align 12")
    a(["L_AT:", "CD_At:"])
    passA(False)
    a([f"s_cmp_lg_u32 s{HALF}, 0", "s_cbranch_scc1 L_B1"])
    consumer(0)
    a(["s_branch L_P2", "L_AN:"])
    passA(True)
    a("L_B1:")
    consumer(1)

    if cfg.get("stubs", 1): a(["s_branch L_P2", ".p2align 6", "PG_J:", "s_setpc_b64 s[100:101]"])
    a("L_P2:")
    KVA, KVB, DM = 16, 17, 18
    a([f"s_lshl_b32 s{KVA}, s{HEAD}, 17", f"s_add_u32 s{KVA}, s{KVA}, {hex(KV_OFF)}", f"s_add_u32 s{KVB}, s{KVA}, 0x400000",
       f"s_lshl_b32 s{DM}, s{WV}, 10", f"s_add_u32 s19, s{KVB}, s{DM}",
       f"s_lshl_b32 s22, s{QR}, 14", f"s_add_u32 s22, s22, {2*8192}",
       f"s_mul_i32 s21, s{HG}, {128*FSTR}", f"s_add_u32 s21, s21, {hex(FP_OFF)}"])
    fpoll = [f"buffer_load_dwordx2 {vr(PL,2)}, v{FPA}, {S4(SWS)}, s21 offen sc1"]
    lpoll = [f"s_add_u32 s58, s21, {3*1024*FSTR}", f"buffer_load_dwordx2 {vr(PL,2)}, v{FPA}, {S4(SWS)}, s58 offen sc1"]
    f3poll = [f"buffer_load_dwordx2 {vr(PL+2,2)}, v{F3A}, {S4(SWS)}, s53 offen sc1"]
    def masked(mask, lines):
        return [f"s_mov_b64 exec, {hex(mask)}"] + lines + ["s_mov_b64 exec, -1"]
    a(cand("Ph"))
    st(6)
    a("s_barrier")
    st(7)

    PA = 64
    assert PA % 2 == 0
    def isA(p): return PA <= p < PA + 9
    def btile(p): return p if p < PA else p - 9
    abase = {"b": 0}
    def koff(p):
        if isA(p):
            return ADA, (8 - (p - PA)) * 2048
        return ADR, btile(p) * 2048 - abase["b"]
    def rdK(p):
        r, o = koff(p)
        assert 0 <= o < 65536 - 2048
        return f"ds_read_b128 {vr(KBUF[p&1],4)}, v{r} offset:{o}"
    def rdV(p, g):
        r, o = koff(p)
        assert 0 <= o < 65536 - 2048
        return f"ds_read_b128 {vr((V0B if g == 0 else V1B)[p & 1],4)}, v{r} offset:{o+1024+256*g}"
    def Qof(p): return QA if isA(p) else QB
    def Cof(p): return CX if p in (PA, PA + 8) else (CA if isA(p) else CB)
    def Oof(p): return OA if isA(p) else OB

    def block(t, first=False, last=False, ins=None, xm=None):
        s = S[t & 1]
        I = {i: [] for i in range(16)}
        pos = (5, 8, 11) if xm else (4, 8, 12)
        if not first: I[pos[0]].append(f"{SMFMAC} {vr(Oof(t-1),16)}, {vr(V1B[(t-1)&1],4)}, {vr(S[(t-1)&1]+8,8)}, v{IDX}")
        if not last: I[pos[1]].append(f"{MFMA} {vr(S[(t+1)&1],16)}, {vr(KBUF[(t+1)&1],4)}, {vr(Qof(t+1),4)}, {vr(Cof(t+1),16)}")
        I[pos[2]].append(f"{SMFMAC} {vr(Oof(t),16)}, {vr(V0B[t&1],4)}, {vr(s,8)}, v{IDX}")
        if xm:
            I[2] += xm[0]; I[14] += xm[1]
        if cfg.get("tstamp") and t > 0:
            I[15].append(f"v_writelane_b32 v{252 + ((t-1) >> 6)}, s96, {(t-1) & 63}")
        for k, v in (ins or {}).items():
            I[k] += v
        for i in range(16):
            if i == 1: a("s_setprio 1")
            a(I[i])
            if i == 15: a("s_setprio 0")
            a(f"v_exp_f32 v{s+i}, v{s+i}")
    def tail(t, extra=None, xrd=(), pre=None):
        if pre: a(pre)
        n = len(xrd)
        if t + 3 <= 72:
            a(rdK(t+3)); n += 1
        a(list(xrd))
        a(f"s_mov_b64 exec, s[{VMASK}:{VMASK+1}]")
        if t + 1 <= 72:
            a(rdV(t+1, 1)); n += 1
        if t + 2 <= 72:
            a(rdV(t+2, 0)); n += 1
        a("s_mov_b64 exec, -1")
        if extra: a(extra)
        if cfg.get("tstamp"):
            a(["s_memtime s[96:97]", "s_waitcnt lgkmcnt(0)"])
        a(f"s_waitcnt lgkmcnt({n})")
    def submax(C):
        src, dst, tmp = S[0], T, T + 1
        a(f"v_max3_f32 v{dst}, v{src}, v{src+1}, v{src+2}")
        a(f"v_max3_f32 v{tmp}, v{src+3}, v{src+4}, v{src+5}")
        for i in range(6, 14, 4):
            a(f"v_max3_f32 v{dst}, v{dst}, v{src+i}, v{src+i+1}")
            a(f"v_max3_f32 v{tmp}, v{tmp}, v{src+i+2}, v{src+i+3}")
        a([f"v_max3_f32 v{dst}, v{dst}, v{src+14}, v{src+15}", f"v_max_f32 v{dst}, v{dst}, v{tmp}", f"v_mov_b32 v{tmp}, v{dst}", "s_nop 1",
           f"v_permlane32_swap_b32 v{dst}, v{tmp}", "s_nop 1",
           f"v_min_f32 v{C}, -v{dst}, -v{tmp}", f"v_min_f32 v{C+1}, -v{dst}, -v{tmp}"])
        for r in range(0, 16, 2):
            a(f"v_pk_add_f32 {vr(S[0]+r,2)}, {vr(S[0]+r,2)}, {vr(C,2)}")
            if r: a(f"v_mov_b64 {vr(C+r,2)}, {vr(C,2)}")
    def cfix(u):
        lb = a.label("cf"); bk = a.label("cb")
        a([f"s_cmp_eq_u32 s{QT}, {u-1}", f"s_cbranch_scc1 {lb}", f"{bk}:"])
        def f():
            a([f"{lb}:", "s_nop 7"] + [f"v_mov_b32 v{CA+r}, v{NI}" for r in range(16)] + ["s_nop 1", f"s_branch {bk}"])
        cold.append(f)

    def slow(br):
        Q = QA if br == 0 else QB
        O = OA if br == 0 else OB
        M, AD, BASE, TM = 236, 237, 238, 239
        C, SS, KK, V0, V1 = (CB, 192, 224, 228, 232) if br == 1 else (CX, CB, 224, 228, 232)
        p1 = a.label("sp1"); p2 = a.label("sp2")
        def setup():
            if br == 0: a([f"v_add_u32 v{AD}, {8*2048}, v{ADA}", f"s_min_u32 s24, s{QT}, 8", "s_add_u32 s24, s24, 1"])
            else: a([f"v_add_u32 v{AD}, s{KVB}, v2", "s_mov_b32 s24, 64"])
            a("s_mov_b32 s25, 0")
        def bias():
            if br == 0:
                a(["s_cmp_lg_u32 s25, 8", "s_cselect_b64 s[26:27], -1, 0", "s_cmp_lg_u32 s25, 0", "s_cselect_b64 s[28:29], -1, 0"])
                for r in range(16):
                    a([f"s_and_b64 s[30:31], {sr(MK+2*r,2)}, s[26:27]", f"s_andn2_b64 vcc, s[28:29], {sr(MK+2*r,2)}",
                       "s_or_b64 vcc, vcc, s[30:31]", f"v_cndmask_b32 v{C+r}, v{NI}, v{BASE}, vcc"])
            else:
                a([f"v_mov_b32 v{C+r}, v{BASE}" for r in range(16)])
        def nxt(lab):
            a(f"v_add_u32 v{AD}, 2048, v{AD}" if br == 1 else f"v_subrev_u32 v{AD}, 2048, v{AD}")
            a(["s_add_u32 s25, s25, 1", "s_cmp_lt_u32 s25, s24", f"s_cbranch_scc1 {lab}"])
        def ld(dst, off):
            if br == 0: a(f"ds_read_b128 {vr(dst,4)}, v{AD} offset:{off}")
            else: a(f"buffer_load_dwordx4 {vr(dst,4)}, v{AD}, {S4(SWS)}, 0 offen offset:{off} sc1")
        a("s_waitcnt lgkmcnt(0)")
        if True:
            for i in range(4):
                a([f"v_mov_b32 v{V0+i}, v{V0B[0]+i}", f"v_mov_b32 v{V1+i}, v{V0B[0]+i}"])
        a([f"v_mov_b32 v{M}, v{NI}", f"v_mov_b32 v{BASE}, 0"])
        setup()
        a(f"{p1}:")
        ld(KK, 0)
        bias()
        a(["s_waitcnt vmcnt(0) lgkmcnt(0)", "s_nop 1", f"{MFMA} {vr(SS,16)}, {vr(KK,4)}, {vr(Q,4)}, {vr(C,16)}", "s_nop 15"])
        a([f"v_max3_f32 v{M}, v{M}, v{SS+i}, v{SS+i+1}" for i in range(0, 16, 2)])
        nxt(p1)
        a([f"v_mov_b32 v{TM}, v{M}", "s_nop 1", f"v_permlane32_swap_b32 v{M}, v{TM}", "s_nop 1", f"v_max_f32 v{M}, v{M}, v{TM}",
           f"v_sub_f32 v{BASE}, 0, v{M}"])
        a([f"v_mov_b32 v{O+i}, 0" for i in range(16)])
        setup()
        a(f"{p2}:")
        ld(KK, 0)
        a(f"s_mov_b64 exec, s[{VMASK}:{VMASK+1}]")
        ld(V0, 1024)
        ld(V1, 1280)
        a("s_mov_b64 exec, -1")
        bias()
        a(["s_waitcnt vmcnt(0) lgkmcnt(0)", "s_nop 1", f"{MFMA} {vr(SS,16)}, {vr(KK,4)}, {vr(Q,4)}, {vr(C,16)}", "s_nop 15"])
        a([f"v_exp_f32 v{SS+i}, v{SS+i}" for i in range(16)])
        a(["s_nop 2", f"{SMFMAC} {vr(O,16)}, {vr(V0,4)}, {vr(SS,8)}, v{IDX}", f"{SMFMAC} {vr(O,16)}, {vr(V1,4)}, {vr(SS+8,8)}, v{IDX}", "s_nop 7"])
        nxt(p2)
        a("s_nop 15")

    def norm(br):
        O = OA if br == 0 else OB
        L = [f"v_rcp_f32 v{T+2}, v{O+8}"]
        pre = [f"v_sub_f32 v{T+3}, 1.0, v{GV}"] if br == 1 else [f"v_mov_b32 v{T+3}, v{GV}"]
        post = [f"v_mul_f32 v{T+2}, v{T+2}, v{T+3}"]
        post += [f"v_pk_mul_f32 {vr(O+i,2)}, {vr(O+i,2)}, {vr(T+2,2)} op_sel_hi:[1,0]" for i in range(0, 8, 2)]
        post += [f"v_cvt_pk_bf16_f32 v{O+12+i}, v{O+2*i}, v{O+2*i+1}" for i in range(4)]
        return L + pre, post
    def finish_valu(br):
        O = OA if br == 0 else OB
        n0, n1 = norm(br)
        L = n0 + [f"v_add_f32 v{T}, abs(v{O}), abs(v{O+1})", f"v_add_f32 v{T+1}, abs(v{O+2}), abs(v{O+3})"]
        for i in (4, 6):
            L += [f"v_add_f32 v{T}, v{T}, abs(v{O+i})", f"v_add_f32 v{T+1}, v{T+1}, abs(v{O+i+1})"]
        L += [f"v_fmac_f32 v{T}, {hex(f32(2.0**87))}, v{O+8}", f"v_add_f32 v{T}, v{T}, v{T+1}", f"v_cmp_ngt_f32 vcc, 0x7f000000, v{T}"]
        return L + n1
    def finish_tail(br, sreg):
        O = OA if br == 0 else OB
        lb = a.label("fbk"); bk = a.label("fok")
        if cfg.get("force_fallback"): a("s_mov_b64 vcc, -1")
        a([f"s_cbranch_vccnz {lb}", f"{bk}:", f"buffer_store_dwordx4 {vr(O+12,4)}, v2, {S4(SWS)}, s{sreg} offen sc1"])
        def f():
            a(f"{lb}:"); slow(br)
            n0, n1 = norm(br)
            a(n0 + n1 + [f"s_branch {bk}"])
        cold.append(f)

    late = [
        [f"s_lshl_b32 s58, s{QT}, 6", f"s_add_u32 s58, s58, s{HEAD}", "s_lshl_b32 s14, s58, 10",
         f"s_add_u32 s14, s14, {hex(OF_OFF)}", "s_add_u32 s15, s14, 0x8000",
         f"s_lshl_b32 s11, s{QT}, 5", f"s_add_u32 s11, s11, s{HEAD}", f"s_mul_i32 s11, s11, {FSTR}", f"s_add_u32 s11, s11, {hex(FO_OFF)}"],
        [f"s_lshr_b32 s48, s{HEAD}, 3", f"s_lshl_b32 s49, s{QR}, 2", "s_add_u32 s48, s48, s49", "s_lshl_b32 s48, s48, 1",
         f"s_and_b32 s49, s{WV}, 1", "s_add_u32 s48, s48, s49", f"s_lshr_b32 s49, s{WV}, 1", f"s_and_b32 s50, s{HEAD}, 7",
         "s_lshl_b32 s51, s48, 5", "s_lshl_b32 s58, s49, 3", "s_add_u32 s51, s51, s58",
         f"s_mul_i32 s53, s51, {FSTR}", f"s_add_u32 s53, s53, {hex(FO_OFF)}"],
        ["s_lshl_b32 s54, s48, 16", "s_lshl_b32 s58, s49, 13", "s_add_u32 s54, s54, s58", f"s_add_u32 s54, s54, {hex(OF_OFF)}",
         "s_add_u32 s51, s54, 0x8000", "s_add_u32 s52, s54, 0x9000", "s_add_u32 s55, s54, 0x1000",
         "s_lshl_b32 s23, s50, 7", f"s_lshl_b32 s58, s{WV}, 13", "s_add_u32 s23, s23, s58"],
        [f"s_lshl_b32 s20, s{QR}, 3", f"s_lshl_b32 s58, s{WV}, 1", "s_add_u32 s20, s20, s58", "s_sub_i32 s20, s20, 8",
         "s_max_i32 s20, s20, 0", "s_lshl_b32 s20, s20, 11", f"s_add_u32 s20, s20, s{KVA}"],
    ]
    def dma_b(pc):
        return ["s_add_u32 s22, s22, 8192", "s_and_b32 s22, s22, 0x1ffff", f"s_add_u32 m0, s{DM}, {pc*8192}", "s_add_u32 s58, s22, s19",
                f"buffer_load_dwordx4 v2, {S4(SWS)}, s58 offen sc1 lds"]
    def dma_wo(u):
        lu = u
        return [f"s_add_u32 m0, s{DM}, {lu*8192}", f"s_add_u32 s58, s23, {(u & 7)*65536}",
                f"buffer_load_dwordx4 v{WOV}, {S4(SWOB if u >= 8 else SWOA)}, s58 offen lds"]
    def load_o(dst, sb):
        return [f"buffer_load_dwordx4 {vr(dst+4*k,4)}, v2, {S4(SWS)}, s{sb + (k >> 2)} offen offset:{(k&3)*1024} sc1" for k in range(8)]
    X = {t: [] for t in range(-1, 73)}
    XP = {t: [] for t in range(73)}
    XR = {t: [] for t in range(73)}
    V = {t: {} for t in range(73)}
    XM = {}
    def vins(t, pos, lines): V[t].setdefault(pos, []).extend(lines)

    def spread(t, lo, hi, lines):
        n = hi - lo + 1
        for k, l in enumerate(lines):
            vins(t, lo + k * n // len(lines), [l])

    def flag_check(t, mask, reg, poll, tag, wait):
        X[t - 1].append(wait)
        vins(t, 15, [f"v_cmp_ne_u64 vcc, s[{NON}:{NON+1}], {vr(reg,2)}"])
        lp = a.label(tag); dn = a.label(tag + "d"); l2 = a.label(tag + "r")
        XP[t] += [f"s_and_b32 s58, vcc_lo, {hex(mask)}", f"s_cbranch_scc1 {lp}", f"{dn}:"]
        def slowp():
            a([f"{lp}:", f"s_mov_b32 s62, {SPIN_MAX}", f"s_mov_b64 exec, {hex(mask)}", f"{l2}:"] + poll +
              ["s_waitcnt vmcnt(0)", f"v_cmp_ne_u64 vcc, s[{NON}:{NON+1}], {vr(reg,2)}", "s_sub_u32 s62, s62, 1",
               f"s_cbranch_scc1 {l2}x", f"s_cbranch_vccnz {l2}", f"{l2}x:", "s_mov_b64 exec, -1", f"s_branch {dn}"])
        cold.append(slowp)

    SYV, SYD, SYW = 3, T + 4, T + 5
    def sync(e, ta, tc, wait):
        vins(ta, 15, [f"v_add_u32 v{SYV}, {e}, v{SYB}"])
        if wait: XP[ta].append(wait)
        XR[ta].append(f"ds_write_b32 v{SYW}, v{SYV}")
        XR[tc - 2].append(f"ds_read_b32 v{SYD}, v{SYR}")
        if e == 1:
            cmp_ = [f"v_sub_u32 v{SYD}, v{SYD}, v{SYV}", f"v_cmp_lt_u32 vcc, 3, v{SYD}"]
        else:
            cmp_ = [f"v_sub_u32 v{SYD}, v{SYV}, v{SYD}", f"v_cmp_eq_u32 vcc, 1, v{SYD}"]
        vins(tc, 13, cmp_[:1]); vins(tc, 15, cmp_[1:])
        lp = a.label("sy"); dn = a.label("syd")
        XP[tc] += [f"s_cbranch_vccnz {lp}", f"{dn}:"]
        def slowp():
            a([f"{lp}:", f"s_mov_b32 s62, {SPIN_MAX * 16}", f"{lp}r:", "s_sleep 1", f"ds_read_b32 v{SYD}, v{SYR}", "s_waitcnt lgkmcnt(0)"] + cmp_ +
              ["s_sub_u32 s62, s62, 1", f"s_cbranch_scc1 {dn}", f"s_cbranch_vccnz {lp}r", f"s_branch {dn}"])
        cold.append(slowp)
    SYB = T + 6

    a([f"ds_read_b128 {vr(QB,4)}, v{QST}", rdK(0), rdK(1), f"s_mov_b64 exec, s[{VMASK}:{VMASK+1}]", rdV(0, 0)])
    a(masked(0x3f8, lpoll))
    a(["s_waitcnt lgkmcnt(2)", f"{MFMA} {vr(S[0],16)}, {vr(KBUF[0],4)}, {vr(QB,4)}, 0"])
    tail(-1)
    a([f"s_and_b32 s58, s{NON}, 0x3fff3ff0", f"v_mov_b32 v{SYB}, s58", f"v_readlane_b32 s59, v{SYR}, s{WV}", "s_setprio 1",
       f"v_mov_b64 {vr(T+12,2)}, -1", f"v_mov_b32 v{SYW}, s59"])
    submax(CB)
    a("s_setprio 0")

    T1 = cfg.get("t1", 2)
    flag_check(T1, 0x3f8, PL, fpoll, "F1", "s_waitcnt vmcnt(0)")
    log = []
    for t, pcs in zip(range(T1, 8), [[3, 4], [5], [6], [7], [8], [9]]):
        for pc in pcs:
            X[t] += dma_b(pc); log.append((t, pc))
        if t == 5:
            X[t] += masked(0xfc00, fpoll); log.append((t, "p"))
    sync(1, 6, 9, f"s_waitcnt vmcnt({sum(1 for t, _ in log if 3 < t < 6)})")
    flag_check(8, 0xfc00, PL, fpoll, "F2", "s_waitcnt vmcnt(2)")
    for t in range(9, 15): X[t] += dma_b(t + 1)
    X[0] += late[0]
    X[1] = late[1] + X[1]
    X[8] += late[2]
    X[16] += late[3]
    TS = cfg.get("ts", 24)
    TF = cfg.get("tf", TS + 14)
    for k in range(4):
        lb = a.label("df")
        X[TS + k] += ["s_cmp_eq_u32 s25, 0", f"s_cbranch_scc1 {lb}",
                      f"buffer_store_dwordx4 {vr(DF+4*k,4)}, v{DA}, {S4(SWS)}, s28 offen sc1",
                      f"s_add_u32 s28, s28, s{29 + (k & 1)}", f"{lb}:"]
    lb = a.label("dg")
    X[TS + 4] += ["s_cmp_lg_u32 s25, 2", f"s_cbranch_scc1 {lb}", "s_mov_b32 exec_hi, 0",
              f"buffer_store_dword v{DG}, v{DGA}, {S4(SWS)}, s24 offen sc1", "s_mov_b64 exec, -1", f"{lb}:"]
    vins(7, 15, [f"v_mov_b64 {vr(T+14,2)}, -1", f"v_mov_b64 {vr(T+8,2)}, s[{NON}:{NON+1}]",
                 f"v_mov_b32 v{T+10}, 0", f"v_and_b32 v{T+11}, 31, v0", f"v_lshlrev_b32 v{T+11}, 2, v{T+11}"])
    X[TS + 5] += [f"buffer_store_dwordx4 {vr(T+12,4)}, v2, {S4(SWS)}, s14 offen sc1"]
    X[TS + 6] += [f"buffer_store_dwordx4 {vr(T+12,4)}, v2, {S4(SWS)}, s15 offen sc1"]
    sync(2, 18, 21, "s_waitcnt vmcnt(0)")
    lb = a.label("fb")
    X[TF] += ["s_waitcnt vmcnt(0)", "s_mov_b64 exec, 1", f"buffer_store_dwordx2 {vr(T+8,2)}, v{T+10}, {S4(SWS)}, s11 offen sc1",
              "s_cmp_eq_u32 s25, 0", f"s_cbranch_scc1 {lb}",
              f"buffer_store_dwordx2 {vr(T+8,2)}, v{T+10}, {S4(SWS)}, s31 offen sc1", f"{lb}:", "s_mov_b64 exec, -1"]
    TA = cfg.get("ta", 43)
    for u in range(4): X[max(21, TF + 1) + u] += dma_wo(u)
    assert max(21, TF + 1) + 3 < TA + 3
    X[TA] += masked(0x7f0000, fpoll)
    X[TA + 1] += masked(0xff, f3poll)
    flag_check(TA + 4, 0x7f0000, PL, fpoll, "F3", "s_waitcnt vmcnt(0)")
    X[TA + 4] += [f"s_lshl_b32 s59, s{WV}, 12", f"s_add_u32 m0, s59, {A_LDS}", f"s_cmp_eq_u32 s{WV}, 0",
                  "s_cselect_b32 exec_lo, -2, -1", "s_mov_b32 exec_hi, exec_lo",
                  f"buffer_load_dwordx4 v2, {S4(SWS)}, s20 offen sc1 lds", "s_mov_b64 exec, -1"]
    for v in range(1, 4):
        X[TA + 4 + ((v + 1) >> 1)] += [f"buffer_load_dwordx4 v2, {S4(SWS)}, s20 offen offset:{v*1024} sc1 lds"]
    X[TA + 6] += [f"s_lshl_b32 s59, s{HEAD}, 6", f"s_add_u32 s59, s59, s{QT}", "s_lshl_b32 s59, s59, 10",
                  f"buffer_load_dwordx4 {vr(QA,4)}, v2, {S4(SWS)}, s59 offen sc1"]
    X[TA + 7] += [f"s_lshl_b32 s58, s{HG}, 13", f"s_lshl_b32 s59, s{QT}, 7", "s_add_u32 s58, s58, s59",
                  f"s_add_u32 s58, s58, {hex(G_OFF)}", f"buffer_load_dword v{GV}, v{T+11}, {S4(SWS)}, s58 offen sc1",
                  "s_add_u32 s58, s58, 0x10000", f"buffer_load_dword v{T+7}, v{T+11}, {S4(SWS)}, s58 offen sc1"]
    spread(56, 3, 13, [f"v_add_f32 v{GV}, v{GV}, v{T+7}", f"v_mul_f32 v{GV}, {hex(f32(-math.log2(math.e)))}, v{GV}", f"v_exp_f32 v{GV}, v{GV}",
                       f"v_add_f32 v{GV}, 1.0, v{GV}", f"v_rcp_f32 v{GV}, v{GV}"])
    flag_check(TA + 9, 0xff, PL + 2, f3poll, "FC", "s_nop 0")
    sync(3, 54, 57, "s_waitcnt vmcnt(0)")
    for u in range(4, 13): X[57 + u - 4] += dma_wo(u)
    KX, SX_ = 192, 196
    XR[PA - 5].append(f"ds_read_b128 {vr(KX,4)}, v{ADA} offset:{8*2048}")
    XM[PA - 3] = [[f"{MFMA} {vr(SX_,16)}, {vr(KX,4)}, {vr(QA,4)}, {vr(CX,16)}"], []]
    m0_, m1_ = T, T + 1
    spread(PA - 2, 2, 7, [f"v_max3_f32 v{m0_}, v{SX_}, v{SX_+1}, v{SX_+2}", f"v_max3_f32 v{m1_}, v{SX_+3}, v{SX_+4}, v{SX_+5}",
                     f"v_max3_f32 v{m0_}, v{m0_}, v{SX_+6}, v{SX_+7}", f"v_max3_f32 v{m1_}, v{m1_}, v{SX_+8}, v{SX_+9}",
                     f"v_max3_f32 v{m0_}, v{m0_}, v{SX_+10}, v{SX_+11}", f"v_max3_f32 v{m1_}, v{m1_}, v{SX_+12}, v{SX_+13}"])
    vins(PA - 2, 8, [f"v_max3_f32 v{m0_}, v{m0_}, v{SX_+14}, v{SX_+15}"])
    vins(PA - 2, 9, [f"v_max_f32 v{m0_}, v{m0_}, v{m1_}"])
    vins(PA - 2, 10, [f"v_mov_b32 v{m1_}, v{m0_}"])
    vins(PA - 2, 12, [f"v_permlane32_swap_b32 v{m0_}, v{m1_}"])
    vins(PA - 2, 14, [f"v_min_f32 v{CA}, -v{m0_}, -v{m1_}", f"v_min_f32 v{CA+1}, -v{m0_}, -v{m1_}"])
    spread(PA - 1, 2, 5, [f"v_pk_add_f32 {vr(CX+r,2)}, {vr(CX+r,2)}, {vr(CA,2)}" for r in range(0, 16, 2)])
    spread(PA - 1, 9, 15, [f"v_mov_b64 {vr(CA+r,2)}, {vr(CA,2)}" for r in range(2, 16, 2)])
    for u in range(1, 8):
        XP[PA - 2 + u].append(lambda u=u: cfix(u))
    spread(PA + 6, 2, 15, [f"v_cndmask_b32 v{CX+r}, v{CA+r}, v{NI}, {sr(MK+2*r,2)}" for r in range(16)])
    def farfix():
        lb = a.label("ff"); bk = a.label("fk")
        a([f"s_cmp_eq_u32 s{QR}, 0", f"s_cbranch_scc1 {lb}", f"{bk}:"])
        cold.append(lambda: a([f"{lb}:"] + [f"v_mov_b32 v{CX+r}, v{NI}" for r in range(16)] + [f"s_branch {bk}"]))
    XP[PA + 6].append(farfix)
    spread(PA + 1, 2, 15, finish_valu(1))
    XP[PA + 1].append(lambda: finish_tail(1, 15))
    sync(4, 63, 66, None)
    X[66] += dma_wo(13) + dma_wo(14)
    X[67] += dma_wo(15)
    lob = load_o(OFB, 51)
    for k in range(4): X[68 + k] += lob[2*k:2*k+2]
    ADV = (24, 48)
    for t in ADV: vins(t, 15, [f"v_add_u32 v{ADR}, {24*2048}, v{ADR}"])
    X[17] += ["s_lshr_b32 s63, s48, 1", "s_lshl_b32 s63, s63, 16", "s_lshl_b32 s59, s50, 7", "s_add_u32 s63, s63, s59"]

    for t in range(72):
        X[t] += cand(f"P{t}")
    for t in range(73):
        nv = sum(1 for k, v in V[t].items() for l in v if "vcc" in l.split(",")[0])
        assert nv <= 1, t
        block(t, first=(t == 0), last=(t == 72), ins=V[t], xm=XM.get(t))
        if t in ADV: abase["b"] += 24 * 2048
        if t < 72:
            tail(t, X[t], XR[t], XP[t])
        if t == 20: st(8)
        if t == 60: st(9)
        if t == 64: st(10)
    a(["s_waitcnt lgkmcnt(0)", "s_nop 0", f"{SMFMAC} {vr(OA,16)}, {vr(V1B[0],4)}, {vr(S[0]+8,8)}, v{IDX}", "s_nop 7", "s_nop 3"])
    a(finish_valu(0))
    finish_tail(0, 14)
    st(11)
    ACC3, ACC4 = 24, 152
    WF = 56
    OFA = 120
    a(cand("Pe0"))
    def valid(ofr):
        return [f"v_max3_u32 v10, v{ofr}, v{ofr+1}, v{ofr+2}", f"v_max3_u32 v9, v{ofr+3}, v{ofr+4}, v{ofr+5}"] + \
               [f"v_max3_u32 v{10 - (k & 1)}, v{10 - (k & 1)}, v{ofr+6+2*k}, v{ofr+7+2*k}" for k in range(13)] + \
               ["v_max_u32 v10, v10, v9", "v_cmp_eq_u32 vcc, -1, v10"]
    a("s_waitcnt vmcnt(9)")
    a("s_barrier")
    st(12)
    def wo_reads(ab):
        return [f"ds_read_b64_tr_b16 {vr(WF+k*8+b*4+t*2,2)}, v{ab+b} offset:{k*2048+t*1024}" for k in range(8) for b in range(2) for t in range(2)]
    rdB = wo_reads(18)
    rdA = wo_reads(16)
    def rd_all(rd):
        for q in range(0, 32, 6):
            if q >= 12: a("s_waitcnt lgkmcnt(8)")
            a(rd[q:q+6])
        a("s_waitcnt lgkmcnt(0)")
    def mm_half(ofr, dst, cin, waits, stream=None, after=None, check=True):
        for k in range(8):
            a(waits(k))
            for b in range(2):
                c = cin(b) if k == 0 else vr(dst + 16*b, 16)
                a(f"{MFMA} {vr(dst+16*b,16)}, {vr(WF+k*8+b*4,4)}, {vr(ofr+4*k,4)}, {c}")
                o = ofr + 4*k + 2*b
                if check: a(f"v_max_u32 v10, v{o}, v{o+1}" if (k == 0 and b == 0) else f"v_max3_u32 v10, v10, v{o}, v{o+1}")
                if stream: a(stream(k, b))
            if after: a(after(k))
        if check: a("v_cmp_eq_u32 vcc, -1, v10")
    OAK = cfg.get("oak", 6)
    loa = load_o(OFA, 54)
    allrd = rdB + rdA
    cnt = {"i": 12}
    def streamB(k, b):
        n = 2 if k < 3 else 3
        lim = 32 + 4 * k
        out = allrd[cnt["i"]: min(cnt["i"] + n, lim)]
        cnt["i"] += len(out)
        return out
    a([f"v_add_u32 v{SYV}, 5, v{SYB}", f"v_mov_b32 v11, v{SYW}"])
    a(allrd[:12])
    a(["s_waitcnt vmcnt(1)"] + valid(OFB))
    a(["s_cbranch_vccnz L_OB", "L_OBD:"])
    cold.insert(0, lambda: a(["L_OB:", f"s_mov_b32 s62, {SPIN_MAX}", "L_OB2:"] + lob + ["s_waitcnt vmcnt(0)"] + valid(OFB) +
                          ["s_sub_u32 s62, s62, 1", "s_cbranch_scc1 L_OBD", "s_cbranch_vccnz L_OB2", "s_branch L_OBD"]))
    def waitB(k):
        n = cnt["i"] - 4 * (k + 1)
        return [f"s_waitcnt lgkmcnt({min(n, 9)})"]
    mm_half(OFB, ACC3, lambda b: "0", waitB, streamB, after=lambda k: loa if k == OAK else [], check=False)
    rest = allrd[cnt["i"]:]
    for q in range(0, len(rest), 5):
        a("s_waitcnt lgkmcnt(9)")
        a(rest[q:q+5])
    if OAK == 8: a(loa)
    a(cand("Pe1"))
    a([f"ds_write_b32 v11, v{SYV}",
       f"s_mov_b32 s62, {SPIN_MAX}", "s_waitcnt lgkmcnt(0)"])
    st(13)
    a(cand("Pe2"))
    a("L_OA:")
    mm_half(OFA, ACC4, lambda b: vr(ACC3 + 16*b, 16), lambda k: [f"s_waitcnt vmcnt({7-k})"],
            after=lambda k: [f"ds_read_b32 v9, v{SYR}"] if k == 6 else [])
    a(["s_sub_u32 s62, s62, 1", "s_cbranch_vccz L_OAD", "s_cbranch_scc1 L_OAD"] + loa + ["s_branch L_OA", "L_OAD:"])
    st(14)
    a(cand("Pe3"))
    a(["s_waitcnt lgkmcnt(0)", f"v_cmp_ne_u32 vcc, v9, v{SYV}", "s_cbranch_vccnz L_SY5", "L_SY5D:"])
    cold.insert(0, lambda: a(["L_SY5:", f"s_mov_b32 s62, {SPIN_MAX * 16}", "L_SY5R:", "s_sleep 1", f"ds_read_b32 v9, v{SYR}", "s_waitcnt lgkmcnt(0)",
                           f"v_cmp_ne_u32 vcc, v9, v{SYV}", "s_sub_u32 s62, s62, 1", "s_cbranch_scc1 L_SY5D", "s_cbranch_vccnz L_SY5R", "s_branch L_SY5D"]))
    for j in range(8):
        if j: a(f"v_xor_b32 v{24+j}, {32*j}, v20")
    for j in range(8):
        a(f"ds_write_b128 v{24+j if j else 20}, {vr(ACC4+4*j,4)}")
    a(["s_waitcnt lgkmcnt(0)", "s_barrier"])
    for u in range(4):
        for r in range(2):
            a(f"ds_read_b128 {vr(WF+u*8+4*r,4)}, v{22+r} offset:{u*16384}")
    for u in range(1, 4):
        a(f"s_waitcnt lgkmcnt({(3-u)*2})")
        for i in range(0, 8, 2):
            a(f"v_pk_add_f32 {vr(WF+i,2)}, {vr(WF+i,2)}, {vr(WF+u*8+i,2)}")
    P = 12
    for i in range(4):
        a(f"v_cvt_pk_bf16_f32 v{P+i}, v{WF+2*i}, v{WF+2*i+1}")
    a(f"buffer_store_dwordx4 {vr(P,4)}, v{OUTA}, {S4(SOUT)}, s63 offen" + ["", " sc1", " nt", " sc0 sc1"][cfg.get("osf", 2)])
    st.flush()
    if cfg.get("tstamp"):
        a(["s_mov_b64 exec, -1", "s_lshl_b32 s100, s2, 3", f"s_add_u32 s100, s100, s{WV}", "s_lshl_b32 s100, s100, 9",
           f"s_add_u32 s100, s100, {hex(STAMP_OFF + (1 << 20))}", "v_lshlrev_b32 v251, 2, v0",
           f"buffer_store_dword v252, v251, {S4(SWS)}, s100 offen", f"buffer_store_dword v253, v251, {S4(SWS)}, s100 offen offset:256"])
    a(["L_END:", "s_endpgm", "CD_zz:"])
    if cfg.get("stubs", 1): a([".p2align 6", "PG_K:", "s_setpc_b64 s[100:101]"])
    while cold:
        cold.pop(0)()

    hdr = open("cdna_kernels/" + NAME + ".s.ref").read().split("; Override launch")[0]
    out = hdr + f"; @launch grid=(256,1,1) block=(512,1,1) lds={LDS_BYTES}\n"
    out += '.amdgcn_target "amdgcn-amd-amdhsa--gfx950"\n.text\n.set CODE_LEFT, L_END - L_CONS - 64\n' + a.text()
    out += f""".section .rodata,"a"
.p2align 6
.amdhsa_kernel {KNAME}
  .amdhsa_next_free_vgpr 256
  .amdhsa_next_free_sgpr 102
  .amdhsa_accum_offset 256
  .amdhsa_group_segment_fixed_size 0
  .amdhsa_kernarg_size 80
  .amdhsa_user_sgpr_count 2
  .amdhsa_user_sgpr_kernarg_segment_ptr 1
  .amdhsa_system_sgpr_workgroup_id_x 1
.end_amdhsa_kernel
"""
    return out

def addrs(text):
    import subprocess, re
    open("_g.s", "w").write(text)
    r = subprocess.run(["clang", "-x", "assembler", "-target", "amdgcn-amd-amdhsa", "-mcpu=gfx950", "-c", "_g.s", "-o", "_g.o"], capture_output=True, text=True)
    assert r.returncode == 0, r.stderr
    o = subprocess.run(["llvm-objdump", "-t", "_g.o"], capture_output=True, text=True).stdout
    return sorted((int(m.group(1), 16), m.group(2)) for m in re.finditer(r"^([0-9a-f]+) .* CD_(\w+)$", o, re.M))

def gen_paged(cfg):
    if not cfg.get("stubs", 1):
        return gen(cfg)
    cfg = dict(cfg); cfg["_chosen"] = {}
    while True:
        c = addrs(gen(cfg))
        new = None
        for (p, n), (p2, n2) in zip(c, c[1:]):
            if n in cfg["_chosen"] or n2 == "At": continue
            if p >> 12 != (p2 + 4) >> 12:
                new = n; break
        if new is None: break
        cfg["_chosen"][new] = True
    print("page breaks at", list(cfg["_chosen"]))
    return gen(cfg)

if __name__ == "__main__":
    cfg = {}
    outp = "cdna_kernels/" + NAME + ".s"
    for arg in sys.argv[1:]:
        if "=" in arg:
            k, v = arg.split("=")
            cfg[k] = int(v)
        else:
            outp = arg
    open(outp, "w").write(gen_paged(cfg))
    print("wrote", outp)
```

```python
import sys, math, struct

NAME = "gated_mix__sliding_block__softmax_full_mha__prompt"
KNAME = NAME + "_kernel"

QF_OFF = 0
KV_OFF = 4 << 20
OF_OFF = 12 << 20
G_OFF = 16 << 20
FP_OFF = (16 << 20) + (512 << 10)
FO_OFF = (16 << 20) + (1024 << 10)
STAMP_OFF = 20 << 20
WS_BYTES = 24 << 20
FSTR = 32

QSCALE = 0.25 * math.log2(math.e)
NEG_INF = 0xff800000
SPIN_MAX = 20000

DOC = """;
"""

def f32(x):
    return struct.unpack("<I", struct.pack("<f", x))[0]

class Asm:
    def __init__(self):
        self.lines = []
        self.uid = 0
    def __call__(self, s):
        if isinstance(s, (list, tuple)):
            for x in s:
                if callable(x): x()
                else: self(x)
            return
        for l in s.split("\n"):
            l = l.strip()
            if not l:
                continue
            self.lines.append(l if (l.endswith(":") or l.startswith(".")) else "    " + l)
    def label(self, base):
        self.uid += 1
        return f"L{base}_{self.uid}"
    def text(self):
        return "\n".join(self.lines) + "\n"

def vr(b, n): return f"v[{b}:{b+n-1}]" if n > 1 else f"v{b}"
def sr(b, n): return f"s[{b}:{b+n-1}]" if n > 1 else f"s{b}"
def S4(b): return f"s[{b}:{b+3}]"
def U(n): return n * 8192

MFMA = "v_mfma_f32_32x32x16_bf16"
SMFMAC = "v_smfmac_f32_32x32x32_bf16"

WV, MT, HG, HALF, ROT, HEAD, QR, QT = 3, 4, 5, 6, 7, 8, 9, 10
NON = 12
SX, SWL, SW3, SWS, SOUT, SWOA, SWOB, SGW, SDBG = 16, 20, 28, 32, 36, 40, 44, 48, 52
VMASK = 56
MK = 64
LDS_BYTES = 163840
A_LDS = 131072

class Stamps:
    def __init__(self, a, cfg):
        self.on = cfg.get("stamps", 0); self.a = a; self.dbgA = cfg.get("dbgA", 0); self.amp = cfg.get("amp", 0); self.ampw = cfg.get("ampw", 0)
    def __call__(self, idx, force=False):
        if not self.on: return
        if self.dbgA and 8 <= idx <= 14 and not force: return
        if self.on == 3:
            if idx == 0: self.a("s_memrealtime s[98:99]")
            if idx == 15: self.a(["v_writelane_b32 v250, s98, 1", "s_memrealtime s[98:99]", "s_waitcnt lgkmcnt(0)", "v_writelane_b32 v250, s98, 31"])
            return
        self.a(["s_memtime s[96:97]", "s_memrealtime s[98:99]", "s_waitcnt lgkmcnt(0)",
                f"v_writelane_b32 v250, s96, {2*idx}", f"v_writelane_b32 v250, s98, {2*idx+1}"])
    def flush(self):
        if not self.on: return
        a = self.a
        a("s_waitcnt vmcnt(0)")
        self(15)
        a(["s_lshl_b32 s100, s2, 3", f"s_add_u32 s100, s100, s{WV}", "s_lshl_b32 s100, s100, 7",
           f"s_add_u32 s100, s100, {hex(STAMP_OFF)}", "v_lshlrev_b32 v251, 2, v0", "s_mov_b32 exec_hi, 0",
           f"buffer_store_dword v250, v251, {S4(SWS)}, s100 offen"])
        if self.amp:
            k, A = self.amp // 100, self.amp % 100
            if k >= 50:
                pre = [f"v_readlane_b32 s96, v250, {2*(k-50)+1 if k < 90 else 1}", "s_nop 0",
                       f"s_sub_i32 s96, s96, s{NON}" if k < 90 else f"s_sub_i32 s96, s{NON}, s96", "s_max_i32 s96, s96, 0"]
            else:
                pre = [f"v_readlane_b32 s96, v250, {2*k+1}", "v_readlane_b32 s97, v250, 1", "s_sub_u32 s96, s96, s97"]
            a(pre + ["s_min_u32 s96, s96, 20000",
               f"s_mul_i32 s96, s96, {A}", f"s_cmp_lg_u32 s{WV}, {self.ampw}", "s_cselect_b32 s96, 0, s96", "s_memrealtime s[98:99]", "s_waitcnt lgkmcnt(0)", "L_AMP:", "s_sleep 1",
               "s_memrealtime s[100:101]", "s_waitcnt lgkmcnt(0)", "s_sub_u32 s100, s100, s98", "s_cmp_lt_u32 s100, s96", "s_cbranch_scc1 L_AMP"])

def gen(cfg):
    global FSTR
    FSTR = cfg.get('fstr', 128)
    PS = cfg.get('ps', 4)
    a = Asm()
    st = Stamps(a, cfg)
    cold = []

    def slot_u(g): return 4 * (3 - (g & 3))
    w3u = [16, 17, 18, 12, 13, 14, 15, 11]
    GW_LDS = U(19)
    QSTAGE = U(10)
    STG = U(4)
    NPRE = 3

    QA, QB = 4, 8
    PL = 12
    KBUF = [24, 28]
    CA, CB = 32, 48
    S = [64, 88]
    T = 104
    V0B = [120, 124]
    V1B = [128, 132]
    CX = 136
    IDX, ADR, ADA, GV, QST, NI = 152, 153, 154, 155, 156, 157
    OA, OB = 160, 176
    OFB = 192
    OUTA, WOV, F3A, FPA, SYR = 243, 244, 245, 246, 247
    DF, DG, DA, DGA = 224, 240, 241, 242

    chosen = cfg.get("_chosen", {})
    def cand(name):
        if name in chosen:
            return [f"CD_{name}:", f"s_branch SK_{name}", ".p2align 12", f"PG_{name}:", "s_setpc_b64 s[100:101]", f"SK_{name}:"]
        return [f"CD_{name}:"]
    def touch(wreg, prefixes):
        if not cfg.get("stubs", 1): return
        names = [n for n in chosen if any(n.startswith(p) for p in prefixes)] + ["J", "K"]
        for w in range(4):
            mine = names[w::4]
            lb = a.label("tc")
            nslot = 3 if w == 0 else 2
            assert len(mine) <= nslot, names
            calls = [f"s_call_b64 s[100:101], PG_{n}" for n in mine] + ["s_nop 0"] * (nslot - len(mine))
            a([f"s_cmp_lg_u32 s{wreg}, {3 - w}", f"s_cbranch_scc1 {lb}"] + calls + [f"{lb}:"])

    def srd(d, base, nbytes):
        return [f"s_mov_b32 s{d}, s{base}", f"s_mov_b32 s{d+1}, s{base+1}", f"s_mov_b32 s{d+2}, {hex(nbytes)}", f"s_mov_b32 s{d+3}, 0x20000"]
    def common_setup():
        L = [srd(SWS, 82, WS_BYTES), srd(SDBG, 80, 256), srd(SOUT, 78, 2048 * 512 * 2), srd(SWOA, 68, 512 * 512 * 2), srd(SWOB, 74, 512 * 512 * 2)]
        L.append([f"s_lshl_b32 s{HEAD}, s{HG}, 2", "s_bfe_u32 s60, s2, 0x20003", f"s_add_u32 s{HEAD}, s{HEAD}, s60",
                  f"s_lshr_b32 s{QR}, s2, 5", f"s_lshl_b32 s{QT}, s{QR}, 3", f"s_add_u32 s{QT}, s{QT}, s{WV}"])
        return L

    def p2_setup():
        L = []
        L += [(0, [l]) for l in ["v_bfe_u32 v16, v0, 2, 2", "v_lshrrev_b32 v17, 5, v0", "v_lshl_add_u32 v16, v17, 2, v16",
              "v_lshlrev_b32 v16, 7, v16", "v_bfe_u32 v17, v0, 4, 1", "v_lshlrev_b32 v17, 1, v17", "v_bfe_u32 v18, v0, 1, 1",
              "v_or_b32 v17, v17, v18", "v_bfe_u32 v18, v0, 3, 1", "v_lshl_or_b32 v17, v18, 2, v17"]]
        L += [(0, [l]) for l in ["v_lshl_add_u32 v16, v17, 4, v16", "v_and_b32 v18, 1, v0", "v_lshl_add_u32 v16, v18, 3, v16"]]
        L.append((0, [f"s_lshr_b32 s58, s{WV}, 1", "s_lshl_b32 s58, s58, 14", "v_add_u32 v16, s58, v16"]))
        L += [(0, [l]) for l in ["v_xor_b32 v17, 64, v16", "v_add_u32 v18, 0x10000, v16", "v_add_u32 v19, 0x10000, v17"]]
        L.append((0, ["v_lshrrev_b32 v3, 5, v0", "v_mul_u32_u24 v3, 40, v3", "v_sub_u32 v3, v0, v3"]))
        for r in range(16):
            L.append((0, [f"v_cmp_le_i32 {sr(MK+2*r,2)}, {16*(r>>3) + (r&7)}, v3"]))
        L.append((4, ["v_and_b32 v3, 0x1b, v0", "v_cmp_eq_u32 vcc, 16, v3", "v_mov_b32 v3, 0x3f803f80",
                  f"s_mov_b32 s{VMASK}, 0xffff", f"s_mov_b32 s{VMASK+1}, 0xffff",
                  f"v_cndmask_b32 v{V0B[0]}, 0, v3, vcc", f"v_cndmask_b32 v{V0B[0]+1}, 0, v3, vcc"]))
        for i in range(1, 8):
            L.append((4, [f"v_mov_b64 {vr(V0B[0]+2*i,2)}, {vr(V0B[0],2)}"]))
        L.append((10, [f"v_mov_b32 v{NI}, {hex(NEG_INF)}"]))
        for r in range(16):
            L.append((10, [f"v_cndmask_b32 v{CX+r}, v{NI}, 0, {sr(MK+2*r,2)}"]))
        L.append((10, [f"v_mov_b32 v{IDX}, 0xdddddddd"]))
        L.append((10, [f"v_mov_b32 v{ADR}, v2"]))
        L.append((10, [f"s_lshl_b32 s58, s{WV}, 11", f"s_add_u32 s58, s58, {A_LDS}", f"v_add_u32 v{ADA}, s58, v2"]))
        L.append((10, [f"s_lshl_b32 s58, s{WV}, 10", f"s_add_u32 s58, s58, {QSTAGE}", f"v_add_u32 v{QST}, s58, v2"]))
        L.append((10, [f"s_lshl_b32 s58, s{QR}, 1", "v_add_u32 v158, s58, v0"]))
        L.append((10, ["v_and_b32 v158, 15, v158"]))
        L.append((10, [f"s_and_b32 s58, s{WV}, 1", "s_lshl_b32 s58, s58, 6", f"s_lshr_b32 s59, s{WV}, 1", "s_add_u32 s58, s58, s59",
                       "v_lshl_add_u32 v158, v158, 2, s58"]))
        L.append((10, ["v_and_b32 v159, 1, v0"]))
        L.append((10, [f"s_lshl_b32 s58, s{QR}, 3", f"s_lshl_b32 s59, s{WV}, 1", "s_add_u32 s58, s58, s59", "s_sub_i32 s58, s58, 8",
                       "s_max_i32 s58, s58, 0", "s_add_u32 s58, s58, 1024", "v_add_u32 v159, s58, v159"]))
        L.append((10, ["v_bfe_u32 v3, v0, 1, 1"]))
        L.append((10, ["v_lshl_add_u32 v159, v3, 6, v159"]))
        L.append((10, ["v_cmp_gt_u32 vcc, 16, v0", "v_and_b32 v3, 1, v0", "v_mul_u32_u24 v3, 1088, v3", "v_cndmask_b32 v158, v159, v158, vcc"]))
        L.append((10, ["v_bfe_u32 v159, v0, 1, 1", "v_lshl_add_u32 v3, v159, 6, v3"]))
        L.append((10, ["v_cmp_le_u32 vcc, 20, v0", f"s_add_u32 s58, s{QT}, 1024", "v_add_u32 v159, s58, v3", "s_nop 0",
                       "v_cndmask_b32 v158, v158, v159, vcc"]))
        for i in range(16):
            L.append((18, [f"v_mov_b64 {vr(OA+2*i,2)}, 0"]))
        L.append((18, ["v_lshrrev_b32 v159, 3, v0", "v_bfe_u32 v3, v0, 4, 1"]))
        L.append((18, ["v_lshlrev_b32 v3, 2, v3", "v_xor_b32 v3, v3, v0"]))
        L.append((18, ["v_and_b32 v3, 7, v3", "v_lshlrev_b32 v3, 4, v3"]))
        L.append((25, ["v_and_b32 v20, 15, v0", "v_lshrrev_b32 v21, 5, v0", "v_xor_b32 v20, v20, v21"]))
        L.append((25, ["v_and_b32 v21, 31, v0", "v_lshlrev_b32 v21, 8, v21", "v_lshl_add_u32 v20, v20, 4, v21"]))
        L.append((25, [f"s_lshl_b32 s58, s{WV}, 13", "s_add_u32 s58, s58, 0x10000", "v_add_u32 v20, s58, v20"]))
        L.append((25, ["v_lshrrev_b32 v21, 3, v0", f"s_lshl_b32 s58, s{WV}, 3", "v_add_u32 v21, s58, v21"]))
        L.append((25, ["v_and_b32 v22, 7, v0", "v_lshlrev_b32 v22, 1, v22", "v_xor_b32 v22, v22, v21"]))
        L.append((25, ["v_and_b32 v22, 15, v22", "v_lshlrev_b32 v22, 4, v22", "v_lshl_add_u32 v22, v21, 8, v22"]))
        L.append((25, ["v_add_u32 v22, 0x10000, v22", "v_xor_b32 v23, 16, v22"]))
        L.append((31, [f"v_and_b32 v{OUTA}, 7, v0", f"v_lshlrev_b32 v{OUTA}, 4, v{OUTA}", f"v_lshl_add_u32 v{OUTA}, v21, 10, v{OUTA}"]))
        L.append((32, [f"v_bfe_u32 v{SYR}, v0, 2, 1", f"v_lshlrev_b32 v{SYR}, 7, v{SYR}", f"v_and_or_b32 v{SYR}, v0, 3, v{SYR}",
                       f"v_lshlrev_b32 v{SYR}, 2, v{SYR}", f"v_add_u32 v{SYR}, {A_LDS}, v{SYR}"]))
        L.append((32, [f"v_lshl_add_u32 v{WOV}, v159, 10, v3"]))
        L.append((32, [f"v_mul_u32_u24 v{FPA}, {FSTR}, v158"]))
        L.append((32, [f"v_mul_u32_u24 v{F3A}, {FSTR}, v0"]))
        return L

    def poll_check(mask, vdata, again, tag):
        lp = a.label(tag); dn = a.label(tag + "d")
        a([f"s_mov_b64 exec, {hex(mask)}", f"v_cmp_ne_u64 vcc, s[{NON}:{NON+1}], {vr(vdata,2)}", f"s_cbranch_vccnz {lp}", f"{dn}:",
           "s_mov_b64 exec, -1"])
        def slowp():
            l2 = a.label(tag + "r")
            a([f"{lp}:", f"s_mov_b32 s62, {SPIN_MAX}", f"{l2}:"] + again +
              ["s_waitcnt vmcnt(0)", f"v_cmp_ne_u64 vcc, s[{NON}:{NON+1}], {vr(vdata,2)}", "s_sub_u32 s62, s62, 1",
               f"s_cbranch_scc1 {dn}", f"s_cbranch_vccnz {l2}", f"s_branch {dn}"])
        cold.append(slowp)
    def nonce_load(vd, vz):
        a(["s_mov_b64 exec, 1", f"buffer_load_dwordx2 {vr(vd,2)}, v{vz}, {S4(SDBG)}, 0 offen sc1", "s_mov_b64 exec, -1"])
    def nonce_get(vd, vz):
        lp = a.label("np"); dn = a.label("nd")
        a([f"v_readfirstlane_b32 s{NON}, v{vd}", f"v_readfirstlane_b32 s{NON+1}, v{vd+1}", f"s_cmp_eq_u32 s{NON}, 0",
           f"s_cbranch_scc1 {lp}", f"{dn}:"])
        def slowp():
            l2 = a.label("nr")
            a([f"{lp}:", f"s_mov_b32 s62, {SPIN_MAX}", f"{l2}:", "s_sleep 2"])
            nonce_load(vd, vz)
            a(["s_waitcnt vmcnt(0)", f"v_readfirstlane_b32 s{NON}, v{vd}", f"v_readfirstlane_b32 s{NON+1}, v{vd+1}",
               "s_sub_u32 s62, s62, 1", f"s_cbranch_scc1 {dn}", f"s_cmp_eq_u32 s{NON}, 0", f"s_cbranch_scc1 {l2}", f"s_branch {dn}"])
        cold.append(slowp)

    def store_setup(wreg, AS, half=None, ren=None):
        L = store_setup0(wreg, AS, half)
        if ren:
            import re
            L = [[re.sub(r"\bs(16|17|18|19|20)\b", lambda m: f"s{ren[int(m.group(1))]}", l) for l in g] for g in L]
        return L
    def store_setup0(wreg, AS, half=None):
        L = [[f"s_lshl_b32 s16, s{MT}, 2", f"s_add_u32 s16, s16, s{wreg}", f"s_lshl_b32 s17, s{HG}, 8", "s_add_u32 s17, s17, s16"],
             ["s_lshl_b32 s18, s17, 11", f"s_add_u32 s18, s18, {hex(KV_OFF)}", "s_lshl_b32 s19, s17, 10", f"s_xor_b32 s20, s{HALF}, 1"],
             ["s_lshl_b32 s20, s20, 21", "s_add_u32 s19, s19, s20", f"s_lshl_b32 s11, s{HG}, 1", f"s_add_u32 s11, s11, s{HALF}"],
             ["s_lshl_b32 s11, s11, 6", "s_add_u32 s11, s11, s16", f"s_mul_i32 s11, s11, {FSTR}", f"s_add_u32 s11, s11, {hex(FP_OFF)}"]]
        k0 = [[f"v_and_b32 v{AS}, 0x33, v0", "v_bfe_u32 v3, v0, 2, 1"], [f"v_lshl_or_b32 v{AS}, v3, 3, v{AS}", "v_bfe_u32 v3, v0, 3, 1"],
              [f"v_lshl_or_b32 v{AS}, v3, 2, v{AS}", f"v_lshlrev_b32 v{AS}, 4, v{AS}"], ["s_mov_b32 s26, 0x20000", "s_mov_b32 s27, 0x20000"]]
        k1 = [[f"v_and_b32 v{AS}, 0x2f, v0", f"v_lshlrev_b32 v{AS}, 4, v{AS}"], ["v_bfe_u32 v3, v0, 4, 1", f"v_lshl_add_u32 v{AS}, v3, 17, v{AS}"],
              [f"v_add_u32 v{AS}, 1024, v{AS}"], ["s_mov_b32 s26, 256", "s_mov_b32 s27, 0x3ff00"]]
        if half is not None:
            return L + (k0 if half == 0 else k1)
        lb = a.label("sv")
        return L + k0 + [[f"s_cmp_eq_u32 s{HALF}, 0", f"s_cbranch_scc1 {lb}"]] + k1 + [[f"{lb}:"]]

    a([f".globl {KNAME}", ".p2align 12", ".p2align 8", f".type {KNAME},@function", f"{KNAME}:"])
    a(["s_load_dwordx16 s[64:79], s[0:1], 0", "s_load_dwordx4 s[80:83], s[0:1], 64",
       "v_lshrrev_b32 v1, 6, v0", "s_cmp_ge_u32 s2, 256", "s_cbranch_scc1 L_END",
       f"v_readfirstlane_b32 s{WV}, v1", "v_and_b32 v0, 63, v0",
       f"s_and_b32 s{HG}, s2, 7", f"s_lshr_b32 s{MT}, s2, 4", f"s_bfe_u32 s{HALF}, s2, 0x10003"])
    st(0)
    a([f"s_cmp_ge_u32 s{WV}, 4", "s_cbranch_scc0 L_CONS"])

    LW = 84
    if cfg.get("lprio", 1) == 2: a("s_setprio 3")
    a([f"s_and_b32 s{LW}, s{WV}, 3",
       {1: [f"s_lshl_b32 s60, s{HALF}, 2", f"s_add_u32 s{ROT}, s{MT}, s60", f"s_add_u32 s{ROT}, s{ROT}, s{HG}", f"s_and_b32 s{ROT}, s{ROT}, 7"],
        4: [f"s_add_u32 s{ROT}, s{MT}, s{HG}", f"s_and_b32 s{ROT}, s{ROT}, 7"],
        5: [f"s_and_b32 s{ROT}, s{MT}, 7"],
        6: [f"s_and_b32 s{ROT}, s{MT}, 3", f"s_lshl_b32 s{ROT}, s{ROT}, 1", f"s_add_u32 s{ROT}, s{ROT}, s{HG}", f"s_and_b32 s{ROT}, s{ROT}, 7"],
        }[cfg.get("rot", 1)],
       "v_lshrrev_b32 v1, 3, v0", "v_bfe_u32 v3, v0, 4, 2",
       "v_xor_b32 v4, v0, v3", "v_and_b32 v4, 7, v4", "v_lshlrev_b32 v4, 4, v4",
       "v_lshl_add_u32 v4, v1, 10, v4",
       f"s_lshl_b32 s85, s{MT}, 17", f"s_lshl_b32 s86, s{LW}, 15", "s_add_u32 s85, s85, s86",
       "v_add_u32 v8, s85, v4", "v_xor_b32 v9, 64, v8", "v_add_u32 v9, 7168, v9",
       "v_add_u32 v10, 14336, v8", "v_add_u32 v11, 14336, v9",
       "v_bfe_u32 v3, v0, 4, 1", "v_lshlrev_b32 v3, 2, v3", "v_xor_b32 v3, v0, v3", "v_and_b32 v3, 7, v3", "v_lshlrev_b32 v3, 4, v3",
       "v_mul_u32_u24 v5, 3072, v1", f"s_lshl_b32 s86, s{HG}, 7", "v_add3_u32 v12, v3, v5, s86",
       f"v_add_u32 v13, {8*3072-1024}, v12", f"v_add_u32 v14, {2*(8*3072-1024)}, v12", f"v_add_u32 v15, {3*(8*3072-1024)}, v12",
       f"s_lshl_b32 s88, s{HALF}, 10", "s_add_u32 s88, s88, 1024",
       f"s_and_b32 s86, s{LW}, 1", f"s_mul_i32 s86, s86, {32*3072}",
       f"s_cmp_lt_u32 s{LW}, 2", "s_cselect_b32 s85, s88, 0", "s_add_u32 s85, s85, s86",
       f"s_lshl_b32 s87, s{LW}, 12",
       f"s_lshr_b32 s86, s{LW}, 1", f"s_and_b32 s86, s86, s{HALF}",
       f"s_mov_b32 s{SX+2}, {hex(2048*512*2)}", f"s_mov_b32 s{SX+3}, 0x20000",
       f"s_mov_b32 s{SWL+2}, {hex(512*1536*2)}", f"s_mov_b32 s{SWL+3}, 0x20000",
       f"s_mov_b32 s89, s{ROT}",
       "s_waitcnt lgkmcnt(0)",
       f"s_mov_b32 s{SX}, s64", f"s_mov_b32 s{SX+1}, s65",
       "s_cmp_eq_u32 s86, 0", f"s_cselect_b32 s{SWL}, s72, s66", f"s_cselect_b32 s{SWL+1}, s73, s67"])
    order = []
    def issue_half(h):
        g, w = divmod(h, 2)
        u = U(slot_u(g))
        if w == 0:
            a([f"s_add_u32 m0, s87, {u}", "s_lshl_b32 s90, s89, 7"])
            for v in range(4):
                a(f"buffer_load_dwordx4 v{8+v}, {S4(SX)}, s90 offen offset:{v*1024} lds"); order.append(g)
        else:
            a([f"s_mul_i32 s90, s89, {64*3072}", f"s_add_u32 m0, s87, {u + 16384}", "s_add_u32 s90, s90, s85"])
            for v in range(4):
                a(f"buffer_load_dwordx4 v{12+v}, {S4(SWL)}, s90 offen offset:{v*1024} lds"); order.append(g)
            a(["s_add_u32 s89, s89, 1", "s_and_b32 s89, s89, 7"])
    PLAN = {0: [4, 7, 10, 12, 14, 16, 16], 1: [4, 6, 8, 10, 13, 16, 16], 2: [4, 6, 9, 12, 14, 16, 16], 3: [3, 6, 9, 12, 14, 16, 16],
            4: [5, 8, 10, 12, 14, 16, 16], 5: [2, 5, 8, 11, 14, 16, 16], 6: [4, 6, 8, 10, 12, 14, 16], 7: [6, 8, 10, 12, 14, 16, 16], 8: [5, 7, 9, 11, 13, 15, 16]}[cfg.get("plan", 2)]
    nh = 0
    while nh < PLAN[0]:
        issue_half(nh); nh += 1
    W3S = 6 if PLAN[5] < 16 else 5
    LAS, LZ, LPA = 40, 41, 42
    a("s_branch L_LOAD2")
    a("L_CONS:")
    XA, WL, WA, AS, AF, NV = 4, 8, 10, 12, 13, 20
    WR, ACC, XF = 24, 56, 120
    def code_prefetch(base_expr, per_wg, vt, dst):
        return ["s_getpc_b64 s[86:87]"] + base_expr + [
                f"v_mul_u32_u24 v{vt}, {per_wg // 64}, v0", f"v_add_u32 v{vt}, s88, v{vt}", f"v_min_u32 v{vt}, s89, v{vt}",
                f"v_mov_b32 v{vt+1}, s87", f"v_add_co_u32 v{vt}, vcc, s86, v{vt}", "s_nop 1",
                f"v_addc_co_u32 v{vt+1}, vcc, 0, v{vt+1}, vcc", f"global_load_dword v{dst}, {vr(vt,2)}, off"]
    if cfg.get("prefc", 1):
        a(code_prefetch(["s_lshr_b32 s88, s2, 3", "s_lshl_b32 s88, s88, 2", f"s_add_u32 s88, s88, s{WV}", "s_mul_i32 s88, s88, 384",
                         "s_mov_b32 s89, CODE_LEFT", "s_mov_b64 exec, 7"], 128 * 64, 24, 249))
        a("s_mov_b64 exec, -1")
    KT, SG, XO = 15, 61, 16
    a([f"s_lshr_b32 s{SG}, s{WV}, 1", f"s_and_b32 s{KT}, s{WV}, 1", f"s_lshl_b32 s{KT}, s{KT}, 1", f"s_add_u32 s{KT}, s{KT}, s{SG}",
       "v_and_b32 v1, 31, v0", "v_lshrrev_b32 v25, 5, v0", "v_bfe_u32 v3, v0, 1, 3", "v_xor_b32 v26, v25, v3", "v_lshlrev_b32 v26, 4, v26",
       "v_lshl_add_u32 v26, v1, 7, v26", f"s_lshl_b32 s86, s{KT}, 12", f"s_add_u32 s86, s86, {U(slot_u(0))}",
       f"v_add_u32 v{XA}, s86, v26", f"v_xor_b32 v{XA+1}, 32, v{XA}", f"v_xor_b32 v{XA+2}, 64, v{XA}", f"v_xor_b32 v{XA+3}, 96, v{XA}"] +
      [f"v_xor_b32 v{XO+k}, 0x1000, v{XA+k}" for k in range(4)] +
      ["v_bfe_u32 v26, v0, 2, 2", "v_lshl_add_u32 v26, v25, 3, v26", "v_lshlrev_b32 v26, 7, v26",
       "v_bfe_u32 v27, v0, 4, 1", "v_lshlrev_b32 v27, 1, v27", "v_bfe_u32 v28, v0, 1, 1", "v_or_b32 v27, v27, v28",
       "v_bfe_u32 v28, v0, 3, 1", "v_lshl_or_b32 v27, v28, 2, v27", "v_lshl_add_u32 v26, v27, 4, v26", "v_and_b32 v28, 1, v0",
       f"v_lshl_add_u32 v{WL}, v28, 3, v26", f"v_xor_b32 v{WL+1}, 64, v{WL}",
       f"s_lshl_b32 s86, s{SG}, 13", f"s_add_u32 s86, s86, {U(slot_u(0)+2)}",
       f"v_add_u32 v{WA}, s86, v{WL}", f"v_add_u32 v{WA+1}, s86, v{WL+1}",
       "v_lshlrev_b32 v14, 4, v25", f"v_mov_b32 v{AF}, 0", "s_waitcnt lgkmcnt(0)"])
    a(srd(SDBG, 80, 256))
    lab = a.label("nn")
    a([f"s_or_b32 s86, s{WV}, s2", "s_cmp_lg_u32 s86, 0", f"s_cbranch_scc1 {lab}",
       "s_memrealtime s[86:87]", "s_waitcnt lgkmcnt(0)", "s_or_b32 s86, s86, 1", f"v_mov_b32 v{NV}, s86", f"v_mov_b32 v{NV+1}, s87",
       "s_mov_b64 exec, 1", f"buffer_store_dwordx2 {vr(NV,2)}, v{AF}, {S4(SDBG)}, 0 offen sc1", "s_mov_b64 exec, -1", f"{lab}:"])

    touch(WV, ["C", "L", "P"])
    a([f"s_cmp_gt_u32 s{HALF}, s{SG}", "s_cbranch_scc1 L_AN", "s_branch L_AT"])
    a("L_LOAD2:")
    def lsetup(k):
        if k == 0:
            a(srd(SW3, 66, 512 * 1536 * 2) + srd(SGW, 76, 1024))
            for grp in common_setup(): a(grp)
        elif k == 1:
            a([f"v_add_u32 v4, s{ROT}, v1", "v_and_b32 v4, 7, v4", "v_lshlrev_b32 v4, 7, v4", "v_and_b32 v5, 7, v0",
               "v_lshl_add_u32 v4, v5, 4, v4", f"s_mov_b32 m0, {GW_LDS}", "v_lshlrev_b32 v2, 4, v0",
               f"buffer_load_dwordx4 v4, {S4(SGW)}, 0 offen lds"]); order.append(8)
            a([f"v_mov_b32 v{LZ}, 0", f"s_lshl_b32 s90, s{LW}, 13", f"s_add_u32 s90, s90, {STG}", "v_add_u32 v4, s90, v2"])
        elif k == 2:
            for grp in store_setup(LW, LAS, ren={16: 92, 17: 93, 18: 94, 19: 95, 20: 60}): a(grp)
        else:
            a([
               "v_lshrrev_b32 v5, 1, v0", f"s_lshl_b32 s90, s{QR}, 1", "v_add_u32 v5, s90, v5", "v_and_b32 v5, 15, v5",
               f"v_lshl_add_u32 v5, v5, 2, s{LW}", f"v_and_b32 v{LPA}, 1, v0", f"v_lshl_add_u32 v5, v{LPA}, 6, v5",
               f"s_lshl_b32 s90, s{LW}, 1", f"s_lshl_b32 s91, s{QR}, 3", "s_add_u32 s90, s90, s91", f"v_add_u32 v{LPA}, s90, v{LPA}",
               f"v_cmp_gt_u32 vcc, {2*NPRE}, v0", f"v_mov_b32 v{DA}, v2", f"v_mov_b32 v{DGA}, v2",
               f"v_cndmask_b32 v{LPA}, v{LPA}, v5, vcc", f"v_mul_u32_u24 v{LPA}, {FSTR}, v{LPA}"])
    st(1)
    for s in range(8):
        last = max(i for i, tg in enumerate(order) if tg == s)
        assert order.count(s) == 8
        if cfg.get("dbgA") == 2 and s > 0: st(7 + s, True)
        a(f"s_waitcnt vmcnt({len(order) - 1 - last})")
        if cfg.get("dbgA") == 1 and s > 0: st(7 + s, True)
        a("s_barrier")
        if s == 0: st(2)
        while s < 6 and nh < PLAN[s + 1]:
            assert nh // 2 <= s + 3
            issue_half(nh); nh += 1
        if s in (0, 3, 4, 7): lsetup((0, 3, 4, 7).index(s))
        if s == 5:
            nonce_load(6, LZ); order.append(8)
        if s in (W3S, W3S + 1):
            q = s - W3S
            tab = sum(w3u[4*q + k] << (8*k) for k in range(4))
            a([f"s_lshl_b32 s90, s{LW}, 3", f"s_lshr_b32 s91, {hex(tab)}, s90", "s_and_b32 s91, s91, 0xff", "s_lshl_b32 s91, s91, 13",
               f"s_add_u32 s90, s{ROT}, s{LW}"] + ([f"s_add_u32 s90, s90, {4*q}"] if q else []) + ["s_and_b32 s90, s90, 7",
               f"s_mul_i32 s90, s90, {64*3072}", "s_mov_b32 m0, s91", "s_add_u32 s90, s90, s88"])
            for hh in range(2):
                if hh: a(["s_add_u32 m0, s91, 4096", f"s_add_u32 s90, s90, {32*3072}"])
                for v in range(4):
                    a(f"buffer_load_dwordx4 v{12+v}, {S4(SW3)}, s90 offen offset:{v*1024} lds"); order.append(8)
    ps = [g for _, g in p2_setup()]
    is_mask = lambda g: any(("v_cmp_le_i32" in l) or (f"v_cndmask_b32 v" in l and ", 0, s[" in l) or ("v_mul_u32_u24 v3, 40" in l) for l in g)
    ps_mask = [g for g in ps if is_mask(g)]
    for k_, grp in enumerate(g for g in ps if not is_mask(g)):
        a(grp)
        if k_ % 16 == 15: a(cand(f"L{k_}"))
    if not cfg.get("b9", 2): a("s_waitcnt vmcnt(0)")
    if cfg.get("b9", 2) == 2: a("s_waitcnt vmcnt(8)")
    if cfg.get("lprio", 1) == 1: a("s_setprio 3")
    a("s_barrier")
    for k in range(8):
        a(f"ds_read_b128 {vr(24+4*k if k < 4 else DF+4*(k-4),4)}, v4 offset:{k*1024}")
    a(["s_add_u32 s21, s94, 0x400000", "s_mov_b32 s19, s95"])
    for k in range(4):
        a([f"s_waitcnt lgkmcnt({7-k})", f"buffer_store_dwordx4 {vr(24+4*k,4)}, v{LAS}, {S4(SWS)}, s21 offen sc1",
           f"s_add_u32 s21, s21, s{26 + (k & 1)}"])
    lb = a.label("q0"); l2 = a.label("q1")
    a(["s_mov_b32 s28, s19", "s_waitcnt lgkmcnt(0)", f"s_cmp_lg_u32 s{HALF}, 0", f"s_cbranch_scc1 {lb}"])
    for k in range(4):
        a([f"buffer_store_dwordx4 {vr(DF+4*k,4)}, v2, {S4(SWS)}, s19 offen sc1", "s_add_u32 s19, s19, 0x10000"])
    if cfg.get("b9", 2):
        a(["s_waitcnt vmcnt(8)", f"s_branch {l2}", f"{lb}:", "s_waitcnt vmcnt(4)", f"{l2}:", "s_barrier"])
    else:
        a(f"{lb}:")
    nonce_get(6, LZ)
    st(3)
    a(["s_mov_b32 s29, 0x10000", "s_mov_b32 s30, 0x10000",
       f"s_add_u32 s31, s11, {2*1024*FSTR}", f"s_mov_b32 s25, s{HALF}",
       f"s_mul_i32 s16, s{HG}, {128*FSTR}", f"s_add_u32 s16, s16, {hex(FP_OFF)}",
       f"s_lshl_b32 s18, s{LW}, 11",
       f"s_lshl_b32 s17, s{HEAD}, 17", f"s_add_u32 s17, s17, {hex(KV_OFF + (4 << 20))}", "s_add_u32 s17, s17, s18",
       f"s_lshl_b32 s20, s{QR}, 3", f"s_lshl_b32 s19, s{HEAD}, 6", "s_add_u32 s19, s19, s20", "s_lshl_b32 s19, s19, 10",
       "s_add_u32 s19, s19, s18", f"s_add_u32 s19, s19, {hex(QF_OFF + (2 << 20))}"])
    for grp in ps_mask: a(grp)
    gflag = ["s_mov_b64 exec, 1", f"buffer_store_dwordx2 v[6:7], v{LZ}, {S4(SWS)}, s11 offen sc1"]
    a([f"s_add_u32 s21, s11, {3*1024*FSTR}", f"s_add_u32 s22, s16, {3*1024*FSTR}", "s_waitcnt vmcnt(0)", "s_mov_b64 exec, 1",
       f"buffer_store_dwordx2 v[6:7], v{LZ}, {S4(SWS)}, s21 offen"])
    st(5)
    pm = f"s_mov_b64 exec, {hex((1 << (2*NPRE+2)) - 1)}"
    def pq(k): return f"buffer_load_dwordx2 {vr(24+2*k,2)}, v{LPA}, {S4(SWS)}, s22 offen sc1"
    PQ = cfg.get("pq", 2)
    a([pm, f"s_mov_b32 s62, {cfg.get('locn', 8)}", pq(0), f"s_sleep {PQ}", pq(1), f"s_sleep {PQ}", "L_FL:"])
    for k in range(3):
        a([pq((k + 2) % 3), "s_waitcnt vmcnt(2)", f"v_cmp_ne_u64 vcc, s[{NON}:{NON+1}], {vr(24+2*k,2)}", "s_cbranch_vccz L_FLD", f"s_sleep {PQ}"])
    a(["s_sub_u32 s62, s62, 1", "s_cbranch_scc0 L_FL", "s_branch L_FG", "L_FLD:"] + (gflag if not cfg.get("gl", 1) else []) + ["L_F0D:", "s_mov_b64 exec, -1"])
    cold.append(lambda: a(["L_FG:"] + gflag + [pm, f"s_mov_b32 s62, {SPIN_MAX}", "L_FG2:",
                          f"buffer_load_dwordx2 v[24:25], v{LPA}, {S4(SWS)}, s16 offen sc1", "s_waitcnt vmcnt(0)",
                          f"v_cmp_ne_u64 vcc, s[{NON}:{NON+1}], v[24:25]", "s_sub_u32 s62, s62, 1", "s_cbranch_scc1 L_F0D",
                          "s_cbranch_vccz L_F0D", f"s_sleep {PS}", "s_branch L_FG2"]))
    st(4)
    a([f"s_add_u32 m0, s18, {QSTAGE}", f"s_lshl_b32 s22, s{QR}, 14"])
    for v in range(2):
        a(f"buffer_load_dwordx4 v2, {S4(SWS)}, s19 offen offset:{v*1024} sc1 lds")
    for pc in range(NPRE):
        a([f"s_add_u32 m0, s18, {pc*8192}", "s_add_u32 s21, s22, s17"])
        for v in range(2):
            a(f"buffer_load_dwordx4 v2, {S4(SWS)}, s21 offen offset:{v*1024} sc1 lds")
        if pc < NPRE - 1: a(["s_add_u32 s22, s22, 8192", "s_and_b32 s22, s22, 0x1ffff"])
    if cfg.get("gl", 1): a(gflag + ["s_mov_b64 exec, -1", "s_setprio 0", "s_waitcnt vmcnt(1)", "s_branch L_P2"])
    else: a(["s_setprio 0", "s_waitcnt vmcnt(0)", "s_branch L_P2"])

    def mm(acc, w, x, swap, first):
        A_ = vr(acc, 16)
        c = "0" if first else A_
        return f"{MFMA} {A_}, {x}, {w}, {c}" if swap else f"{MFMA} {A_}, {w}, {x}, {c}"
    def passA(swap):
        ss = store_setup(KT, AS)
        fillA = common_setup() + [["v_lshlrev_b32 v2, 4, v0"]] + ss[:4] + [sum(ss[4:], [])] + [
            [f"s_lshl_b32 s24, s{HG}, 13", "s_lshl_b32 s25, s16, 7", "s_add_u32 s24, s24, s25", f"s_lshl_b32 s25, s{HALF}, 16",
             "s_add_u32 s24, s24, s25", f"s_add_u32 s24, s24, {hex(G_OFF)}"],
            [f"v_add_u32 v14, {GW_LDS}, v14", f"s_mov_b32 s22, {hex(f32(QSCALE))}", f"s_mov_b32 s23, {hex(f32(QSCALE))}"],
            [f"s_lshl_b32 s21, s{KT}, 1", f"s_add_u32 s21, s21, s{SG}", "s_lshl_b32 s21, s21, 12", f"s_add_u32 s21, s21, {STG}", "v_add_u32 v15, s21, v2"]]
        XT = WR + 16
        def readsA(c, ks):
            i = c*4 + ks
            b = WR + (i & 1) * 8
            tr = [f"ds_read_b64_tr_b16 {vr(b+f*4+t*2,2)}, v{WA+f} offset:{ks*2048+t*512}" for f in range(2) for t in range(2)]
            return [f"ds_read_b128 {vr(XF+i*4,4)}, v{XA+ks}"] + tr + [f"ds_read_b128 {vr(XT+(i&1)*4,4)}, v{XO+ks}"]
        if cfg.get("prefx", 0):
            a(srd(SX, 64, 2048 * 512 * 2) + [f"s_lshl_b32 s86, s{HALF}, 2", f"s_add_u32 s86, s86, s{MT}", f"s_add_u32 s86, s86, s{HG}",
               f"s_add_u32 s86, s86, {cfg['prefx']}", "v_lshrrev_b32 v24, 5, v0", "v_add_u32 v24, s86, v24", "v_and_b32 v24, 7, v24",
               "v_lshlrev_b32 v24, 7, v24", "v_lshl_add_u32 v24, v1, 10, v24", f"s_lshl_b32 s86, s{MT}, 2", f"s_add_u32 s86, s86, s{WV}",
               "s_lshl_b32 s86, s86, 15", f"buffer_load_dword v248, v24, {S4(SX)}, s86 offen"])
        if cfg.get("pref", 1):
            a(srd(SW3, 66, 512 * 1536 * 2) + [f"s_lshl_b32 s86, s{MT}, 2", f"s_add_u32 s86, s86, s{WV}", f"s_mul_i32 s86, s86, {8*3072}",
               f"s_lshl_b32 s87, s{HG}, 7", "s_add_u32 s86, s86, s87", f"s_lshl_b32 s87, s{HALF}, 10", "s_add_u32 s86, s86, s87",
               "v_mul_u32_u24 v24, 3072, v0", "s_mov_b64 exec, 0xff", f"buffer_load_dword v248, v24, {S4(SW3)}, s86 offen offset:1024", "s_mov_b64 exec, -1"])
        st(1)
        a("s_barrier")
        st(2)
        pend = []
        def emit_rd(l, tag):
            a(l); pend.append(tag)
        def wait_for(step, idx):
            pos = max([k for k, tg in enumerate(pend) if tg <= (step, idx)], default=-1)
            if pos >= 0:
                n = len(pend) - 1 - pos
                assert n <= 15
                a(f"s_waitcnt lgkmcnt({n})")
                del pend[:pos + 1]
        for k, l in enumerate(readsA(0, 0)): emit_rd(l, (0, k))
        for c in range(8):
            for ks in range(4):
                i = c*4 + ks
                bnd = (ks == 3 and c < 7)
                rd = readsA(c + 1, 0) if bnd else (readsA(c, ks + 1) if ks < 3 else [])
                b = WR + (i & 1) * 8
                xs = [vr(XF + i*4, 4), vr(XT + (i & 1)*4, 4)]
                mf = [mm(ACC + o*32 + f*16, vr(b+f*4, 4), xs[o], swap, i == 0) for o in range(2) for f in range(2)]
                cuts = [0, 0, 3, 6, 6] if bnd else [0, 2, 4, 6, 6]
                need = [2, 5 if bnd else 4, 5, 5]
                for k, m in enumerate(mf):
                    wait_for(i, need[k])
                    a(m)
                    if bnd and k == 0:
                        d = U(slot_u(c + 1)) - U(slot_u(c))
                        for r in [XA, XO, WA, WA+1]:
                            a(f"v_add_u32 v{r}, {d}, v{r}" if d > 0 else f"v_subrev_u32 v{r}, {-d}, v{r}")
                    if bnd and k == 1:
                        if cfg.get("dbgA") == 2: st(8 + c, True)
                        a("s_barrier")
                        if cfg.get("dbgA") == 1: st(8 + c, True)
                    for q in range(cuts[k], cuts[k+1]):
                        if q < len(rd): emit_rd(rd[q], (i + 1, q))
                    if bnd and k == 3:
                        for r in [XA+1, XA+2, XA+3, XO+1, XO+2, XO+3]:
                            a(f"v_add_u32 v{r}, {d}, v{r}" if d > 0 else f"v_subrev_u32 v{r}, {-d}, v{r}")
                    if k == 3 and ks < 3 and fillA: a(fillA.pop(0))
                    if k == 3: a(cand(f"C{int(swap)}A{i}"))
        assert not fillA
        st(3)
        a(["v_xor_b32 v16, 0x2000, v15", "s_nop 7"])
        if not swap:
            lb = a.label("ns")
            a([f"s_cmp_eq_u32 s{SG}, 0", f"s_cbranch_scc1 {lb}"] +
              [f"v_pk_mul_f32 {vr(ACC+2*k,2)}, {vr(ACC+2*k,2)}, s[22:23]" for k in range(32)] + [f"{lb}:"])
        else:
            a("s_nop 1")
        for q in range(4):
            t = ACC + 16*q
            for k in range(8):
                a(f"v_cvt_pk_bf16_f32 v{t+k}, v{t+2*k}, v{t+2*k+1}")
                if k in (3, 7):
                    a(f"ds_write_b128 v{15 + (q >> 1)}, {vr(t+k-3,4)} offset:{(2*(q & 1) + (k >> 2))*1024}")
        nonce_load(NV, AF)
        a(["s_waitcnt lgkmcnt(0)", "s_barrier"])
        if cfg.get("b9", 2) == 1: a("s_barrier")
        st(4)
    def consumer(half):
        GR, GACC = 88, 104
        GH = 0 if cfg.get('rot', 1) == 1 else half
        filler2 = p2_setup()
        outstanding = []
        wbase = {"u": None}
        def readsB(i):
            c, ks = divmod(i, 4)
            u = w3u[c]
            out = []
            if wbase["u"] is None or not (0 <= u - wbase["u"] <= 3):
                wbase["u"] = u
                out += [f"v_add_u32 v{WA+f}, {U(u)}, v{WL+f}" for f in range(2)]
            wo = (u - wbase["u"]) * 8192
            for f in range(2):
                for t in range(2):
                    out.append(f"ds_read_b64_tr_b16 {vr(WR+(i%4)*8+f*4+t*2,2)}, v{WA+f} offset:{wo+ks*2048+t*512}")
                    outstanding.append(i)
            if i // 16 == GH:
                out.append(f"ds_read_b128 {vr(GR+(i%4)*4,4)}, v14 offset:{i*32}")
                outstanding.append(i)
            return out
        DB = 3
        for i in range(DB): a(readsB(i))
        for i in range(32):
            n = sum(1 for s_ in outstanding if s_ > i)
            a(f"s_waitcnt lgkmcnt({n})")
            outstanding[:] = [s_ for s_ in outstanding if s_ > i]
            if cfg.get("b9", 2) == 2 and i == 5: a("s_barrier")
            if i == cfg.get("rb", -1):
                a(["v_and_b32 v4, 7, v0", "v_bfe_u32 v5, v0, 3, 2", "v_lshlrev_b32 v4, 7, v4", "v_lshl_add_u32 v6, v5, 17, v4",
                   f"s_add_u32 s58, s18, {0x400000 + 1024*half}", "s_mov_b32 exec_hi, 0",
                   f"buffer_load_dword v248, v6, {S4(SWS)}, s58 offen sc1"])
                if half == 0:
                    a(["v_lshl_add_u32 v6, v5, 16, v4", f"buffer_load_dword v249, v6, {S4(SWS)}, s19 offen sc1"])
                a("s_mov_b64 exec, -1")
            rd = readsB(i + DB) if i + DB < 32 else []
            x = vr(XF + i*4, 4)
            mf = [mm(ACC + f*16, vr(WR+(i%4)*8+f*4, 4), x, half == 1, i == 0) for f in range(2)]
            if i // 16 == GH:
                mf.append(mm(GACC, vr(GR+(i%4)*4, 4), x, False, i % 16 == 0))
            h_ = (len(rd) + 1) // 2
            for f, m in enumerate(mf):
                a(m)
                a(rd[f*h_:(f+1)*h_])
                for _ in range(2):
                    if filler2 and filler2[0][0] <= i:
                        a(filler2.pop(0)[1])
            a(cand(f"C{half}B{i}"))
            if i == 24:
                a("s_waitcnt vmcnt(0)")
                nonce_get(NV, AF)
        for _, grp in filler2: a(grp)
        st(5)
        a([f"v_mov_b32 v{DA}, v{AS}", "s_mov_b32 s28, s18", "s_mov_b32 s29, s26", "s_mov_b32 s30, s27",
           f"s_add_u32 s31, s11, {1024*FSTR}", "s_mov_b32 s25, 2", f"v_lshlrev_b32 v{DGA}, 2, v1",
           "s_nop 4"])
        for k in range(16):
            a(f"v_cvt_pk_bf16_f32 v{DF+k}, v{ACC+2*k}, v{ACC+2*k+1}")
        a(f"v_mov_b32 v{DG}, v{GACC}")
    if cfg.get("stubs", 1): a(".p2align 12")
    a(["L_AT:", "CD_At:"])
    passA(False)
    a([f"s_cmp_lg_u32 s{HALF}, 0", "s_cbranch_scc1 L_B1"])
    consumer(0)
    a(["s_branch L_P2", "L_AN:"])
    passA(True)
    a("L_B1:")
    consumer(1)

    if cfg.get("stubs", 1): a(["s_branch L_P2", ".p2align 6", "PG_J:", "s_setpc_b64 s[100:101]"])
    a("; ---- P2: attention")
    a("L_P2:")
    KVA, KVB, DM = 16, 17, 18
    a([f"s_lshl_b32 s{KVA}, s{HEAD}, 17", f"s_add_u32 s{KVA}, s{KVA}, {hex(KV_OFF)}", f"s_add_u32 s{KVB}, s{KVA}, 0x400000",
       f"s_lshl_b32 s{DM}, s{WV}, 10", f"s_add_u32 s19, s{KVB}, s{DM}",
       f"s_lshl_b32 s22, s{QR}, 14", f"s_add_u32 s22, s22, {2*8192}",
       f"s_mul_i32 s21, s{HG}, {128*FSTR}", f"s_add_u32 s21, s21, {hex(FP_OFF)}"])
    fpoll = [f"buffer_load_dwordx2 {vr(PL,2)}, v{FPA}, {S4(SWS)}, s21 offen sc1"]
    lpoll = [f"s_add_u32 s58, s21, {3*1024*FSTR}", f"buffer_load_dwordx2 {vr(PL,2)}, v{FPA}, {S4(SWS)}, s58 offen sc1"]
    f3poll = [f"buffer_load_dwordx2 {vr(PL+2,2)}, v{F3A}, {S4(SWS)}, s53 offen sc1"]
    def masked(mask, lines):
        return [f"s_mov_b64 exec, {hex(mask)}"] + lines + ["s_mov_b64 exec, -1"]
    a(cand("Ph"))
    st(6)
    a("s_barrier")
    st(7)

    PA = 64
    assert PA % 2 == 0
    def isA(p): return PA <= p < PA + 9
    def btile(p): return p if p < PA else p - 9
    abase = {"b": 0}
    def koff(p):
        if isA(p):
            return ADA, (8 - (p - PA)) * 2048
        return ADR, btile(p) * 2048 - abase["b"]
    def rdK(p):
        r, o = koff(p)
        assert 0 <= o < 65536 - 2048
        return f"ds_read_b128 {vr(KBUF[p&1],4)}, v{r} offset:{o}"
    def rdV(p, g):
        r, o = koff(p)
        assert 0 <= o < 65536 - 2048
        return f"ds_read_b128 {vr((V0B if g == 0 else V1B)[p & 1],4)}, v{r} offset:{o+1024+256*g}"
    def Qof(p): return QA if isA(p) else QB
    def Cof(p): return CX if p in (PA, PA + 8) else (CA if isA(p) else CB)
    def Oof(p): return OA if isA(p) else OB

    def block(t, first=False, last=False, ins=None, xm=None):
        s = S[t & 1]
        I = {i: [] for i in range(16)}
        pos = (5, 8, 11) if xm else (4, 8, 12)
        if not first: I[pos[0]].append(f"{SMFMAC} {vr(Oof(t-1),16)}, {vr(V1B[(t-1)&1],4)}, {vr(S[(t-1)&1]+8,8)}, v{IDX}")
        if not last: I[pos[1]].append(f"{MFMA} {vr(S[(t+1)&1],16)}, {vr(KBUF[(t+1)&1],4)}, {vr(Qof(t+1),4)}, {vr(Cof(t+1),16)}")
        I[pos[2]].append(f"{SMFMAC} {vr(Oof(t),16)}, {vr(V0B[t&1],4)}, {vr(s,8)}, v{IDX}")
        if xm:
            I[2] += xm[0]; I[14] += xm[1]
        if cfg.get("tstamp") and t > 0:
            I[15].append(f"v_writelane_b32 v{252 + ((t-1) >> 6)}, s96, {(t-1) & 63}")
        for k, v in (ins or {}).items():
            I[k] += v
        for i in range(16):
            if i == 1: a("s_setprio 1")
            a(I[i])
            if i == 15: a("s_setprio 0")
            a(f"v_exp_f32 v{s+i}, v{s+i}")
    def tail(t, extra=None, xrd=(), pre=None):
        if pre: a(pre)
        n = len(xrd)
        if t + 3 <= 72:
            a(rdK(t+3)); n += 1
        a(list(xrd))
        a(f"s_mov_b64 exec, s[{VMASK}:{VMASK+1}]")
        if t + 1 <= 72:
            a(rdV(t+1, 1)); n += 1
        if t + 2 <= 72:
            a(rdV(t+2, 0)); n += 1
        a("s_mov_b64 exec, -1")
        if extra: a(extra)
        if cfg.get("tstamp"):
            a(["s_memtime s[96:97]", "s_waitcnt lgkmcnt(0)"])
        a(f"s_waitcnt lgkmcnt({n})")
    def submax(C):
        src, dst, tmp = S[0], T, T + 1
        a(f"v_max3_f32 v{dst}, v{src}, v{src+1}, v{src+2}")
        a(f"v_max3_f32 v{tmp}, v{src+3}, v{src+4}, v{src+5}")
        for i in range(6, 14, 4):
            a(f"v_max3_f32 v{dst}, v{dst}, v{src+i}, v{src+i+1}")
            a(f"v_max3_f32 v{tmp}, v{tmp}, v{src+i+2}, v{src+i+3}")
        a([f"v_max3_f32 v{dst}, v{dst}, v{src+14}, v{src+15}", f"v_max_f32 v{dst}, v{dst}, v{tmp}", f"v_mov_b32 v{tmp}, v{dst}", "s_nop 1",
           f"v_permlane32_swap_b32 v{dst}, v{tmp}", "s_nop 1",
           f"v_min_f32 v{C}, -v{dst}, -v{tmp}", f"v_min_f32 v{C+1}, -v{dst}, -v{tmp}"])
        for r in range(0, 16, 2):
            a(f"v_pk_add_f32 {vr(S[0]+r,2)}, {vr(S[0]+r,2)}, {vr(C,2)}")
            if r: a(f"v_mov_b64 {vr(C+r,2)}, {vr(C,2)}")
    def cfix(u):
        lb = a.label("cf"); bk = a.label("cb")
        a([f"s_cmp_eq_u32 s{QT}, {u-1}", f"s_cbranch_scc1 {lb}", f"{bk}:"])
        def f():
            a([f"{lb}:", "s_nop 7"] + [f"v_mov_b32 v{CA+r}, v{NI}" for r in range(16)] + ["s_nop 1", f"s_branch {bk}"])
        cold.append(f)

    def slow(br):
        Q = QA if br == 0 else QB
        O = OA if br == 0 else OB
        M, AD, BASE, TM = 236, 237, 238, 239
        C, SS, KK, V0, V1 = (CB, 192, 224, 228, 232) if br == 1 else (CX, CB, 224, 228, 232)
        p1 = a.label("sp1"); p2 = a.label("sp2")
        def setup():
            if br == 0: a([f"v_add_u32 v{AD}, {8*2048}, v{ADA}", f"s_min_u32 s24, s{QT}, 8", "s_add_u32 s24, s24, 1"])
            else: a([f"v_add_u32 v{AD}, s{KVB}, v2", "s_mov_b32 s24, 64"])
            a("s_mov_b32 s25, 0")
        def bias():
            if br == 0:
                a(["s_cmp_lg_u32 s25, 8", "s_cselect_b64 s[26:27], -1, 0", "s_cmp_lg_u32 s25, 0", "s_cselect_b64 s[28:29], -1, 0"])
                for r in range(16):
                    a([f"s_and_b64 s[30:31], {sr(MK+2*r,2)}, s[26:27]", f"s_andn2_b64 vcc, s[28:29], {sr(MK+2*r,2)}",
                       "s_or_b64 vcc, vcc, s[30:31]", f"v_cndmask_b32 v{C+r}, v{NI}, v{BASE}, vcc"])
            else:
                a([f"v_mov_b32 v{C+r}, v{BASE}" for r in range(16)])
        def nxt(lab):
            a(f"v_add_u32 v{AD}, 2048, v{AD}" if br == 1 else f"v_subrev_u32 v{AD}, 2048, v{AD}")
            a(["s_add_u32 s25, s25, 1", "s_cmp_lt_u32 s25, s24", f"s_cbranch_scc1 {lab}"])
        def ld(dst, off):
            if br == 0: a(f"ds_read_b128 {vr(dst,4)}, v{AD} offset:{off}")
            else: a(f"buffer_load_dwordx4 {vr(dst,4)}, v{AD}, {S4(SWS)}, 0 offen offset:{off} sc1")
        a("s_waitcnt lgkmcnt(0)")
        if True:
            for i in range(4):
                a([f"v_mov_b32 v{V0+i}, v{V0B[0]+i}", f"v_mov_b32 v{V1+i}, v{V0B[0]+i}"])
        a([f"v_mov_b32 v{M}, v{NI}", f"v_mov_b32 v{BASE}, 0"])
        setup()
        a(f"{p1}:")
        ld(KK, 0)
        bias()
        a(["s_waitcnt vmcnt(0) lgkmcnt(0)", "s_nop 1", f"{MFMA} {vr(SS,16)}, {vr(KK,4)}, {vr(Q,4)}, {vr(C,16)}", "s_nop 15"])
        a([f"v_max3_f32 v{M}, v{M}, v{SS+i}, v{SS+i+1}" for i in range(0, 16, 2)])
        nxt(p1)
        a([f"v_mov_b32 v{TM}, v{M}", "s_nop 1", f"v_permlane32_swap_b32 v{M}, v{TM}", "s_nop 1", f"v_max_f32 v{M}, v{M}, v{TM}",
           f"v_sub_f32 v{BASE}, 0, v{M}"])
        a([f"v_mov_b32 v{O+i}, 0" for i in range(16)])
        setup()
        a(f"{p2}:")
        ld(KK, 0)
        a(f"s_mov_b64 exec, s[{VMASK}:{VMASK+1}]")
        ld(V0, 1024)
        ld(V1, 1280)
        a("s_mov_b64 exec, -1")
        bias()
        a(["s_waitcnt vmcnt(0) lgkmcnt(0)", "s_nop 1", f"{MFMA} {vr(SS,16)}, {vr(KK,4)}, {vr(Q,4)}, {vr(C,16)}", "s_nop 15"])
        a([f"v_exp_f32 v{SS+i}, v{SS+i}" for i in range(16)])
        a(["s_nop 2", f"{SMFMAC} {vr(O,16)}, {vr(V0,4)}, {vr(SS,8)}, v{IDX}", f"{SMFMAC} {vr(O,16)}, {vr(V1,4)}, {vr(SS+8,8)}, v{IDX}", "s_nop 7"])
        nxt(p2)
        a("s_nop 15")

    def norm(br):
        O = OA if br == 0 else OB
        L = [f"v_rcp_f32 v{T+2}, v{O+8}"]
        pre = [f"v_sub_f32 v{T+3}, 1.0, v{GV}"] if br == 1 else [f"v_mov_b32 v{T+3}, v{GV}"]
        post = [f"v_mul_f32 v{T+2}, v{T+2}, v{T+3}"]
        post += [f"v_pk_mul_f32 {vr(O+i,2)}, {vr(O+i,2)}, {vr(T+2,2)} op_sel_hi:[1,0]" for i in range(0, 8, 2)]
        post += [f"v_cvt_pk_bf16_f32 v{O+12+i}, v{O+2*i}, v{O+2*i+1}" for i in range(4)]
        return L + pre, post
    def finish_valu(br):
        O = OA if br == 0 else OB
        n0, n1 = norm(br)
        L = n0 + [f"v_add_f32 v{T}, abs(v{O}), abs(v{O+1})", f"v_add_f32 v{T+1}, abs(v{O+2}), abs(v{O+3})"]
        for i in (4, 6):
            L += [f"v_add_f32 v{T}, v{T}, abs(v{O+i})", f"v_add_f32 v{T+1}, v{T+1}, abs(v{O+i+1})"]
        L += [f"v_fmac_f32 v{T}, {hex(f32(2.0**87))}, v{O+8}", f"v_add_f32 v{T}, v{T}, v{T+1}", f"v_cmp_ngt_f32 vcc, 0x7f000000, v{T}"]
        return L + n1
    def finish_tail(br, sreg):
        O = OA if br == 0 else OB
        lb = a.label("fbk"); bk = a.label("fok")
        if cfg.get("force_fallback"): a("s_mov_b64 vcc, -1")
        a([f"s_cbranch_vccnz {lb}", f"{bk}:", f"buffer_store_dwordx4 {vr(O+12,4)}, v2, {S4(SWS)}, s{sreg} offen sc1"])
        def f():
            a(f"{lb}:"); slow(br)
            n0, n1 = norm(br)
            a(n0 + n1 + [f"s_branch {bk}"])
        cold.append(f)

    late = [
        [f"s_lshl_b32 s58, s{QT}, 6", f"s_add_u32 s58, s58, s{HEAD}", "s_lshl_b32 s14, s58, 10",
         f"s_add_u32 s14, s14, {hex(OF_OFF)}", "s_add_u32 s15, s14, 0x8000",
         f"s_lshl_b32 s11, s{QT}, 5", f"s_add_u32 s11, s11, s{HEAD}", f"s_mul_i32 s11, s11, {FSTR}", f"s_add_u32 s11, s11, {hex(FO_OFF)}"],
        [f"s_lshr_b32 s48, s{HEAD}, 3", f"s_lshl_b32 s49, s{QR}, 2", "s_add_u32 s48, s48, s49", "s_lshl_b32 s48, s48, 1",
         f"s_and_b32 s49, s{WV}, 1", "s_add_u32 s48, s48, s49", f"s_lshr_b32 s49, s{WV}, 1", f"s_and_b32 s50, s{HEAD}, 7",
         "s_lshl_b32 s51, s48, 5", "s_lshl_b32 s58, s49, 3", "s_add_u32 s51, s51, s58",
         f"s_mul_i32 s53, s51, {FSTR}", f"s_add_u32 s53, s53, {hex(FO_OFF)}"],
        ["s_lshl_b32 s54, s48, 16", "s_lshl_b32 s58, s49, 13", "s_add_u32 s54, s54, s58", f"s_add_u32 s54, s54, {hex(OF_OFF)}",
         "s_add_u32 s51, s54, 0x8000", "s_add_u32 s52, s54, 0x9000", "s_add_u32 s55, s54, 0x1000",
         "s_lshl_b32 s23, s50, 7", f"s_lshl_b32 s58, s{WV}, 13", "s_add_u32 s23, s23, s58"],
        [f"s_lshl_b32 s20, s{QR}, 3", f"s_lshl_b32 s58, s{WV}, 1", "s_add_u32 s20, s20, s58", "s_sub_i32 s20, s20, 8",
         "s_max_i32 s20, s20, 0", "s_lshl_b32 s20, s20, 11", f"s_add_u32 s20, s20, s{KVA}"],
    ]
    def dma_b(pc):
        return ["s_add_u32 s22, s22, 8192", "s_and_b32 s22, s22, 0x1ffff", f"s_add_u32 m0, s{DM}, {pc*8192}", "s_add_u32 s58, s22, s19",
                f"buffer_load_dwordx4 v2, {S4(SWS)}, s58 offen sc1 lds"]
    def dma_wo(u):
        lu = u
        return [f"s_add_u32 m0, s{DM}, {lu*8192}", f"s_add_u32 s58, s23, {(u & 7)*65536}",
                f"buffer_load_dwordx4 v{WOV}, {S4(SWOB if u >= 8 else SWOA)}, s58 offen lds"]
    def load_o(dst, sb):
        return [f"buffer_load_dwordx4 {vr(dst+4*k,4)}, v2, {S4(SWS)}, s{sb + (k >> 2)} offen offset:{(k&3)*1024} sc1" for k in range(8)]
    X = {t: [] for t in range(-1, 73)}
    XP = {t: [] for t in range(73)}
    XR = {t: [] for t in range(73)}
    V = {t: {} for t in range(73)}
    XM = {}
    def vins(t, pos, lines): V[t].setdefault(pos, []).extend(lines)

    def spread(t, lo, hi, lines):
        n = hi - lo + 1
        for k, l in enumerate(lines):
            vins(t, lo + k * n // len(lines), [l])

    def flag_check(t, mask, reg, poll, tag, wait):
        X[t - 1].append(wait)
        vins(t, 15, [f"v_cmp_ne_u64 vcc, s[{NON}:{NON+1}], {vr(reg,2)}"])
        lp = a.label(tag); dn = a.label(tag + "d"); l2 = a.label(tag + "r")
        XP[t] += [f"s_and_b32 s58, vcc_lo, {hex(mask)}", f"s_cbranch_scc1 {lp}", f"{dn}:"]
        def slowp():
            a([f"{lp}:", f"s_mov_b32 s62, {SPIN_MAX}", f"s_mov_b64 exec, {hex(mask)}", f"{l2}:"] + poll +
              ["s_waitcnt vmcnt(0)", f"v_cmp_ne_u64 vcc, s[{NON}:{NON+1}], {vr(reg,2)}", "s_sub_u32 s62, s62, 1",
               f"s_cbranch_scc1 {l2}x", f"s_cbranch_vccnz {l2}", f"{l2}x:", "s_mov_b64 exec, -1", f"s_branch {dn}"])
        cold.append(slowp)

    SYV, SYD, SYW = 3, T + 4, T + 5
    def sync(e, ta, tc, wait):
        vins(ta, 15, [f"v_add_u32 v{SYV}, {e}, v{SYB}"])
        if wait: XP[ta].append(wait)
        XR[ta].append(f"ds_write_b32 v{SYW}, v{SYV}")
        XR[tc - 2].append(f"ds_read_b32 v{SYD}, v{SYR}")
        if e == 1:
            cmp_ = [f"v_sub_u32 v{SYD}, v{SYD}, v{SYV}", f"v_cmp_lt_u32 vcc, 3, v{SYD}"]
        else:
            cmp_ = [f"v_sub_u32 v{SYD}, v{SYV}, v{SYD}", f"v_cmp_eq_u32 vcc, 1, v{SYD}"]
        vins(tc, 13, cmp_[:1]); vins(tc, 15, cmp_[1:])
        lp = a.label("sy"); dn = a.label("syd")
        XP[tc] += [f"s_cbranch_vccnz {lp}", f"{dn}:"]
        def slowp():
            a([f"{lp}:", f"s_mov_b32 s62, {SPIN_MAX * 16}", f"{lp}r:", "s_sleep 1", f"ds_read_b32 v{SYD}, v{SYR}", "s_waitcnt lgkmcnt(0)"] + cmp_ +
              ["s_sub_u32 s62, s62, 1", f"s_cbranch_scc1 {dn}", f"s_cbranch_vccnz {lp}r", f"s_branch {dn}"])
        cold.append(slowp)
    SYB = T + 6

    a([f"ds_read_b128 {vr(QB,4)}, v{QST}", rdK(0), rdK(1), f"s_mov_b64 exec, s[{VMASK}:{VMASK+1}]", rdV(0, 0)])
    a(masked(0x3f8, lpoll))
    a(["s_waitcnt lgkmcnt(2)", f"{MFMA} {vr(S[0],16)}, {vr(KBUF[0],4)}, {vr(QB,4)}, 0"])
    tail(-1)
    a([f"s_and_b32 s58, s{NON}, 0x3fff3ff0", f"v_mov_b32 v{SYB}, s58", f"v_readlane_b32 s59, v{SYR}, s{WV}", "s_setprio 1",
       f"v_mov_b64 {vr(T+12,2)}, -1", f"v_mov_b32 v{SYW}, s59"])
    submax(CB)
    a("s_setprio 0")

    T1 = cfg.get("t1", 2)
    flag_check(T1, 0x3f8, PL, fpoll, "F1", "s_waitcnt vmcnt(0)")
    log = []
    for t, pcs in zip(range(T1, 8), [[3, 4], [5], [6], [7], [8], [9]]):
        for pc in pcs:
            X[t] += dma_b(pc); log.append((t, pc))
        if t == 5:
            X[t] += masked(0xfc00, fpoll); log.append((t, "p"))
    sync(1, 6, 9, f"s_waitcnt vmcnt({sum(1 for t, _ in log if 3 < t < 6)})")
    flag_check(8, 0xfc00, PL, fpoll, "F2", "s_waitcnt vmcnt(2)")
    for t in range(9, 15): X[t] += dma_b(t + 1)
    X[0] += late[0]
    X[1] = late[1] + X[1]
    X[8] += late[2]
    X[16] += late[3]
    TS = cfg.get("ts", 24)
    TF = cfg.get("tf", TS + 14)
    for k in range(4):
        lb = a.label("df")
        X[TS + k] += ["s_cmp_eq_u32 s25, 0", f"s_cbranch_scc1 {lb}",
                      f"buffer_store_dwordx4 {vr(DF+4*k,4)}, v{DA}, {S4(SWS)}, s28 offen sc1",
                      f"s_add_u32 s28, s28, s{29 + (k & 1)}", f"{lb}:"]
    lb = a.label("dg")
    X[TS + 4] += ["s_cmp_lg_u32 s25, 2", f"s_cbranch_scc1 {lb}", "s_mov_b32 exec_hi, 0",
              f"buffer_store_dword v{DG}, v{DGA}, {S4(SWS)}, s24 offen sc1", "s_mov_b64 exec, -1", f"{lb}:"]
    vins(7, 15, [f"v_mov_b64 {vr(T+14,2)}, -1", f"v_mov_b64 {vr(T+8,2)}, s[{NON}:{NON+1}]",
                 f"v_mov_b32 v{T+10}, 0", f"v_and_b32 v{T+11}, 31, v0", f"v_lshlrev_b32 v{T+11}, 2, v{T+11}"])
    X[TS + 5] += [f"buffer_store_dwordx4 {vr(T+12,4)}, v2, {S4(SWS)}, s14 offen sc1"]
    X[TS + 6] += [f"buffer_store_dwordx4 {vr(T+12,4)}, v2, {S4(SWS)}, s15 offen sc1"]
    sync(2, 18, 21, "s_waitcnt vmcnt(0)")
    lb = a.label("fb")
    X[TF] += ["s_waitcnt vmcnt(0)", "s_mov_b64 exec, 1", f"buffer_store_dwordx2 {vr(T+8,2)}, v{T+10}, {S4(SWS)}, s11 offen sc1",
              "s_cmp_eq_u32 s25, 0", f"s_cbranch_scc1 {lb}",
              f"buffer_store_dwordx2 {vr(T+8,2)}, v{T+10}, {S4(SWS)}, s31 offen sc1", f"{lb}:", "s_mov_b64 exec, -1"]
    TA = cfg.get("ta", 43)
    for u in range(4): X[max(21, TF + 1) + u] += dma_wo(u)
    assert max(21, TF + 1) + 3 < TA + 3
    X[TA] += masked(0x7f0000, fpoll)
    X[TA + 1] += masked(0xff, f3poll)
    flag_check(TA + 4, 0x7f0000, PL, fpoll, "F3", "s_waitcnt vmcnt(0)")
    X[TA + 4] += [f"s_lshl_b32 s59, s{WV}, 12", f"s_add_u32 m0, s59, {A_LDS}", f"s_cmp_eq_u32 s{WV}, 0",
                  "s_cselect_b32 exec_lo, -2, -1", "s_mov_b32 exec_hi, exec_lo",
                  f"buffer_load_dwordx4 v2, {S4(SWS)}, s20 offen sc1 lds", "s_mov_b64 exec, -1"]
    for v in range(1, 4):
        X[TA + 4 + ((v + 1) >> 1)] += [f"buffer_load_dwordx4 v2, {S4(SWS)}, s20 offen offset:{v*1024} sc1 lds"]
    X[TA + 6] += [f"s_lshl_b32 s59, s{HEAD}, 6", f"s_add_u32 s59, s59, s{QT}", "s_lshl_b32 s59, s59, 10",
                  f"buffer_load_dwordx4 {vr(QA,4)}, v2, {S4(SWS)}, s59 offen sc1"]
    X[TA + 7] += [f"s_lshl_b32 s58, s{HG}, 13", f"s_lshl_b32 s59, s{QT}, 7", "s_add_u32 s58, s58, s59",
                  f"s_add_u32 s58, s58, {hex(G_OFF)}", f"buffer_load_dword v{GV}, v{T+11}, {S4(SWS)}, s58 offen sc1",
                  "s_add_u32 s58, s58, 0x10000", f"buffer_load_dword v{T+7}, v{T+11}, {S4(SWS)}, s58 offen sc1"]
    spread(56, 3, 13, [f"v_add_f32 v{GV}, v{GV}, v{T+7}", f"v_mul_f32 v{GV}, {hex(f32(-math.log2(math.e)))}, v{GV}", f"v_exp_f32 v{GV}, v{GV}",
                       f"v_add_f32 v{GV}, 1.0, v{GV}", f"v_rcp_f32 v{GV}, v{GV}"])
    flag_check(TA + 9, 0xff, PL + 2, f3poll, "FC", "s_nop 0")
    sync(3, 54, 57, "s_waitcnt vmcnt(0)")
    for u in range(4, 13): X[57 + u - 4] += dma_wo(u)
    KX, SX_ = 192, 196
    XR[PA - 5].append(f"ds_read_b128 {vr(KX,4)}, v{ADA} offset:{8*2048}")
    XM[PA - 3] = [[f"{MFMA} {vr(SX_,16)}, {vr(KX,4)}, {vr(QA,4)}, {vr(CX,16)}"], []]
    m0_, m1_ = T, T + 1
    spread(PA - 2, 2, 7, [f"v_max3_f32 v{m0_}, v{SX_}, v{SX_+1}, v{SX_+2}", f"v_max3_f32 v{m1_}, v{SX_+3}, v{SX_+4}, v{SX_+5}",
                     f"v_max3_f32 v{m0_}, v{m0_}, v{SX_+6}, v{SX_+7}", f"v_max3_f32 v{m1_}, v{m1_}, v{SX_+8}, v{SX_+9}",
                     f"v_max3_f32 v{m0_}, v{m0_}, v{SX_+10}, v{SX_+11}", f"v_max3_f32 v{m1_}, v{m1_}, v{SX_+12}, v{SX_+13}"])
    vins(PA - 2, 8, [f"v_max3_f32 v{m0_}, v{m0_}, v{SX_+14}, v{SX_+15}"])
    vins(PA - 2, 9, [f"v_max_f32 v{m0_}, v{m0_}, v{m1_}"])
    vins(PA - 2, 10, [f"v_mov_b32 v{m1_}, v{m0_}"])
    vins(PA - 2, 12, [f"v_permlane32_swap_b32 v{m0_}, v{m1_}"])
    vins(PA - 2, 14, [f"v_min_f32 v{CA}, -v{m0_}, -v{m1_}", f"v_min_f32 v{CA+1}, -v{m0_}, -v{m1_}"])
    spread(PA - 1, 2, 5, [f"v_pk_add_f32 {vr(CX+r,2)}, {vr(CX+r,2)}, {vr(CA,2)}" for r in range(0, 16, 2)])
    spread(PA - 1, 9, 15, [f"v_mov_b64 {vr(CA+r,2)}, {vr(CA,2)}" for r in range(2, 16, 2)])
    for u in range(1, 8):
        XP[PA - 2 + u].append(lambda u=u: cfix(u))
    spread(PA + 6, 2, 15, [f"v_cndmask_b32 v{CX+r}, v{CA+r}, v{NI}, {sr(MK+2*r,2)}" for r in range(16)])
    def farfix():
        lb = a.label("ff"); bk = a.label("fk")
        a([f"s_cmp_eq_u32 s{QR}, 0", f"s_cbranch_scc1 {lb}", f"{bk}:"])
        cold.append(lambda: a([f"{lb}:"] + [f"v_mov_b32 v{CX+r}, v{NI}" for r in range(16)] + [f"s_branch {bk}"]))
    XP[PA + 6].append(farfix)
    spread(PA + 1, 2, 15, finish_valu(1))
    XP[PA + 1].append(lambda: finish_tail(1, 15))
    sync(4, 63, 66, None)
    X[66] += dma_wo(13) + dma_wo(14)
    X[67] += dma_wo(15)
    lob = load_o(OFB, 51)
    for k in range(4): X[68 + k] += lob[2*k:2*k+2]
    ADV = (24, 48)
    for t in ADV: vins(t, 15, [f"v_add_u32 v{ADR}, {24*2048}, v{ADR}"])
    X[17] += ["s_lshr_b32 s63, s48, 1", "s_lshl_b32 s63, s63, 16", "s_lshl_b32 s59, s50, 7", "s_add_u32 s63, s63, s59"]

    for t in range(72):
        X[t] += cand(f"P{t}")
    for t in range(73):
        nv = sum(1 for k, v in V[t].items() for l in v if "vcc" in l.split(",")[0])
        assert nv <= 1, t
        block(t, first=(t == 0), last=(t == 72), ins=V[t], xm=XM.get(t))
        if t in ADV: abase["b"] += 24 * 2048
        if t < 72:
            tail(t, X[t], XR[t], XP[t])
        if t == 20: st(8)
        if t == 60: st(9)
        if t == 64: st(10)
    a(["s_waitcnt lgkmcnt(0)", "s_nop 0", f"{SMFMAC} {vr(OA,16)}, {vr(V1B[0],4)}, {vr(S[0]+8,8)}, v{IDX}", "s_nop 7", "s_nop 3"])
    a(finish_valu(0))
    finish_tail(0, 14)
    st(11)
    ACC3, ACC4 = 24, 152
    WF = 56
    OFA = 120
    a(cand("Pe0"))
    def valid(ofr):
        return [f"v_max3_u32 v10, v{ofr}, v{ofr+1}, v{ofr+2}", f"v_max3_u32 v9, v{ofr+3}, v{ofr+4}, v{ofr+5}"] + \
               [f"v_max3_u32 v{10 - (k & 1)}, v{10 - (k & 1)}, v{ofr+6+2*k}, v{ofr+7+2*k}" for k in range(13)] + \
               ["v_max_u32 v10, v10, v9", "v_cmp_eq_u32 vcc, -1, v10"]
    a("s_waitcnt vmcnt(9)")
    a("s_barrier")
    st(12)
    def wo_reads(ab):
        return [f"ds_read_b64_tr_b16 {vr(WF+k*8+b*4+t*2,2)}, v{ab+b} offset:{k*2048+t*1024}" for k in range(8) for b in range(2) for t in range(2)]
    rdB = wo_reads(18)
    rdA = wo_reads(16)
    def rd_all(rd):
        for q in range(0, 32, 6):
            if q >= 12: a("s_waitcnt lgkmcnt(8)")
            a(rd[q:q+6])
        a("s_waitcnt lgkmcnt(0)")
    def mm_half(ofr, dst, cin, waits, stream=None, after=None, check=True):
        for k in range(8):
            a(waits(k))
            for b in range(2):
                c = cin(b) if k == 0 else vr(dst + 16*b, 16)
                a(f"{MFMA} {vr(dst+16*b,16)}, {vr(WF+k*8+b*4,4)}, {vr(ofr+4*k,4)}, {c}")
                o = ofr + 4*k + 2*b
                if check: a(f"v_max_u32 v10, v{o}, v{o+1}" if (k == 0 and b == 0) else f"v_max3_u32 v10, v10, v{o}, v{o+1}")
                if stream: a(stream(k, b))
            if after: a(after(k))
        if check: a("v_cmp_eq_u32 vcc, -1, v10")
    OAK = cfg.get("oak", 6)
    loa = load_o(OFA, 54)
    allrd = rdB + rdA
    cnt = {"i": 12}
    def streamB(k, b):
        n = 2 if k < 3 else 3
        lim = 32 + 4 * k
        out = allrd[cnt["i"]: min(cnt["i"] + n, lim)]
        cnt["i"] += len(out)
        return out
    a([f"v_add_u32 v{SYV}, 5, v{SYB}", f"v_mov_b32 v11, v{SYW}"])
    a(allrd[:12])
    a(["s_waitcnt vmcnt(1)"] + valid(OFB))
    a(["s_cbranch_vccnz L_OB", "L_OBD:"])
    cold.insert(0, lambda: a(["L_OB:", f"s_mov_b32 s62, {SPIN_MAX}", "L_OB2:"] + lob + ["s_waitcnt vmcnt(0)"] + valid(OFB) +
                          ["s_sub_u32 s62, s62, 1", "s_cbranch_scc1 L_OBD", "s_cbranch_vccnz L_OB2", "s_branch L_OBD"]))
    def waitB(k):
        n = cnt["i"] - 4 * (k + 1)
        return [f"s_waitcnt lgkmcnt({min(n, 9)})"]
    mm_half(OFB, ACC3, lambda b: "0", waitB, streamB, after=lambda k: loa if k == OAK else [], check=False)
    rest = allrd[cnt["i"]:]
    for q in range(0, len(rest), 5):
        a("s_waitcnt lgkmcnt(9)")
        a(rest[q:q+5])
    if OAK == 8: a(loa)
    a(cand("Pe1"))
    a([f"ds_write_b32 v11, v{SYV}",
       f"s_mov_b32 s62, {SPIN_MAX}", "s_waitcnt lgkmcnt(0)"])
    st(13)
    a(cand("Pe2"))
    a("L_OA:")
    mm_half(OFA, ACC4, lambda b: vr(ACC3 + 16*b, 16), lambda k: [f"s_waitcnt vmcnt({7-k})"],
            after=lambda k: [f"ds_read_b32 v9, v{SYR}"] if k == 6 else [])
    a(["s_sub_u32 s62, s62, 1", "s_cbranch_vccz L_OAD", "s_cbranch_scc1 L_OAD"] + loa + ["s_branch L_OA", "L_OAD:"])
    st(14)
    a(cand("Pe3"))
    a(["s_waitcnt lgkmcnt(0)", f"v_cmp_ne_u32 vcc, v9, v{SYV}", "s_cbranch_vccnz L_SY5", "L_SY5D:"])
    cold.insert(0, lambda: a(["L_SY5:", f"s_mov_b32 s62, {SPIN_MAX * 16}", "L_SY5R:", "s_sleep 1", f"ds_read_b32 v9, v{SYR}", "s_waitcnt lgkmcnt(0)",
                           f"v_cmp_ne_u32 vcc, v9, v{SYV}", "s_sub_u32 s62, s62, 1", "s_cbranch_scc1 L_SY5D", "s_cbranch_vccnz L_SY5R", "s_branch L_SY5D"]))
    for j in range(8):
        if j: a(f"v_xor_b32 v{24+j}, {32*j}, v20")
    for j in range(8):
        a(f"ds_write_b128 v{24+j if j else 20}, {vr(ACC4+4*j,4)}")
    a(["s_waitcnt lgkmcnt(0)", "s_barrier"])
    for u in range(4):
        for r in range(2):
            a(f"ds_read_b128 {vr(WF+u*8+4*r,4)}, v{22+r} offset:{u*16384}")
    for u in range(1, 4):
        a(f"s_waitcnt lgkmcnt({(3-u)*2})")
        for i in range(0, 8, 2):
            a(f"v_pk_add_f32 {vr(WF+i,2)}, {vr(WF+i,2)}, {vr(WF+u*8+i,2)}")
    P = 12
    for i in range(4):
        a(f"v_cvt_pk_bf16_f32 v{P+i}, v{WF+2*i}, v{WF+2*i+1}")
    a(f"buffer_store_dwordx4 {vr(P,4)}, v{OUTA}, {S4(SOUT)}, s63 offen" + ["", " sc1", " nt", " sc0 sc1"][cfg.get("osf", 2)])
    st.flush()
    if cfg.get("tstamp"):
        a(["s_mov_b64 exec, -1", "s_lshl_b32 s100, s2, 3", f"s_add_u32 s100, s100, s{WV}", "s_lshl_b32 s100, s100, 9",
           f"s_add_u32 s100, s100, {hex(STAMP_OFF + (1 << 20))}", "v_lshlrev_b32 v251, 2, v0",
           f"buffer_store_dword v252, v251, {S4(SWS)}, s100 offen", f"buffer_store_dword v253, v251, {S4(SWS)}, s100 offen offset:256"])
    a(["L_END:", "s_endpgm", "CD_zz:"])
    if cfg.get("stubs", 1): a([".p2align 6", "PG_K:", "s_setpc_b64 s[100:101]"])
    while cold:
        cold.pop(0)()

    hdr = open("cdna_kernels/" + NAME + ".s.ref").read().split("; Override launch")[0]
    out = hdr + f"; @launch grid=(256,1,1) block=(512,1,1) lds={LDS_BYTES}\n" + DOC
    out += '.amdgcn_target "amdgcn-amd-amdhsa--gfx950"\n.text\n.set CODE_LEFT, L_END - L_CONS - 64\n' + a.text()
    out += f""".section .rodata,"a"
.p2align 6
.amdhsa_kernel {KNAME}
  .amdhsa_next_free_vgpr 256
  .amdhsa_next_free_sgpr 102
  .amdhsa_accum_offset 256
  .amdhsa_group_segment_fixed_size 0
  .amdhsa_kernarg_size 80
  .amdhsa_user_sgpr_count 2
  .amdhsa_user_sgpr_kernarg_segment_ptr 1
  .amdhsa_system_sgpr_workgroup_id_x 1
.end_amdhsa_kernel
"""
    return out

def addrs(text):
    import subprocess, re
    open("_g.s", "w").write(text)
    r = subprocess.run(["clang", "-x", "assembler", "-target", "amdgcn-amd-amdhsa", "-mcpu=gfx950", "-c", "_g.s", "-o", "_g.o"], capture_output=True, text=True)
    assert r.returncode == 0, r.stderr
    o = subprocess.run(["llvm-objdump", "-t", "_g.o"], capture_output=True, text=True).stdout
    return sorted((int(m.group(1), 16), m.group(2)) for m in re.finditer(r"^([0-9a-f]+) .* CD_(\w+)$", o, re.M))

def gen_paged(cfg):
    if not cfg.get("stubs", 1):
        return gen(cfg)
    cfg = dict(cfg); cfg["_chosen"] = {}
    while True:
        c = addrs(gen(cfg))
        new = None
        for (p, n), (p2, n2) in zip(c, c[1:]):
            if n in cfg["_chosen"] or n2 == "At": continue
            if p >> 12 != (p2 + 4) >> 12:
                new = n; break
        if new is None: break
        cfg["_chosen"][new] = True
    at = [p for p, n in c if n == "At"][0]
    print("page breaks at", list(cfg["_chosen"]), "pass A at", hex(at), "" if at == 0x1000 else "  <<<< loader code leaves the first page")
    return gen(cfg)

if __name__ == "__main__":
    cfg = {}
    outp = "cdna_kernels/" + NAME + ".s"
    for arg in sys.argv[1:]:
        if "=" in arg:
            k, v = arg.split("=")
            cfg[k] = int(v)
        else:
            outp = arg
    open(outp, "w").write(gen_paged(cfg))
    print("wrote", outp)
```

```python
import sys, math, struct

NAME = "gated_mix__sliding_block__softmax_full_mha__prompt"
KNAME = NAME + "_kernel"

QF_OFF = 0
KV_OFF = 4 << 20
OF_OFF = 12 << 20
G_OFF = 16 << 20
FP_OFF = (16 << 20) + (512 << 10)
FO_OFF = (16 << 20) + (1024 << 10)
STAMP_OFF = 20 << 20
WS_BYTES = 24 << 20
FSTR = 32

QSCALE = 0.25 * math.log2(math.e)
NEG_INF = 0xff800000
SPIN_MAX = 20000

DOC = """;
"""

def f32(x):
    return struct.unpack("<I", struct.pack("<f", x))[0]

class Asm:
    def __init__(self):
        self.lines = []
        self.uid = 0
    def __call__(self, s):
        if isinstance(s, (list, tuple)):
            for x in s:
                if callable(x): x()
                else: self(x)
            return
        for l in s.split("\n"):
            l = l.strip()
            if not l:
                continue
            self.lines.append(l if (l.endswith(":") or l.startswith(".")) else "    " + l)
    def label(self, base):
        self.uid += 1
        return f"L{base}_{self.uid}"
    def text(self):
        return "\n".join(self.lines) + "\n"

def vr(b, n): return f"v[{b}:{b+n-1}]" if n > 1 else f"v{b}"
def sr(b, n): return f"s[{b}:{b+n-1}]" if n > 1 else f"s{b}"
def S4(b): return f"s[{b}:{b+3}]"
def U(n): return n * 8192

MFMA = "v_mfma_f32_32x32x16_bf16"
SMFMAC = "v_smfmac_f32_32x32x32_bf16"

WV, MT, HG, HALF, ROT, HEAD, QR, QT = 3, 4, 5, 6, 7, 8, 9, 10
NON = 12
SX, SWL, SW3, SWS, SOUT, SWOA, SWOB, SGW, SDBG = 16, 20, 28, 32, 36, 40, 44, 48, 52
VMASK = 56
MK = 64
LDS_BYTES = 163840
A_LDS = 131072

class Stamps:
    def __init__(self, a, cfg):
        self.on = cfg.get("stamps", 0); self.a = a; self.dbgA = cfg.get("dbgA", 0); self.amp = cfg.get("amp", 0); self.ampw = cfg.get("ampw", 0)
    def __call__(self, idx, force=False):
        if not self.on: return
        if self.dbgA and 8 <= idx <= 14 and not force: return
        if self.on == 3:
            if idx == 0: self.a("s_memrealtime s[98:99]")
            if idx == 15: self.a(["v_writelane_b32 v250, s98, 1", "s_memrealtime s[98:99]", "s_waitcnt lgkmcnt(0)", "v_writelane_b32 v250, s98, 31"])
            return
        self.a(["s_memtime s[96:97]", "s_memrealtime s[98:99]", "s_waitcnt lgkmcnt(0)",
                f"v_writelane_b32 v250, s96, {2*idx}", f"v_writelane_b32 v250, s98, {2*idx+1}"])
    def flush(self):
        if not self.on: return
        a = self.a
        a("s_waitcnt vmcnt(0)")
        self(15)
        a(["s_lshl_b32 s100, s2, 3", f"s_add_u32 s100, s100, s{WV}", "s_lshl_b32 s100, s100, 7",
           f"s_add_u32 s100, s100, {hex(STAMP_OFF)}", "v_lshlrev_b32 v251, 2, v0", "s_mov_b32 exec_hi, 0",
           f"buffer_store_dword v250, v251, {S4(SWS)}, s100 offen"])
        if self.amp:
            k, A = self.amp // 100, self.amp % 100
            if k >= 50:
                pre = [f"v_readlane_b32 s96, v250, {2*(k-50)+1 if k < 90 else 1}", "s_nop 0",
                       f"s_sub_i32 s96, s96, s{NON}" if k < 90 else f"s_sub_i32 s96, s{NON}, s96", "s_max_i32 s96, s96, 0"]
            else:
                pre = [f"v_readlane_b32 s96, v250, {2*k+1}", "v_readlane_b32 s97, v250, 1", "s_sub_u32 s96, s96, s97"]
            a(pre + ["s_min_u32 s96, s96, 20000",
               f"s_mul_i32 s96, s96, {A}", f"s_cmp_lg_u32 s{WV}, {self.ampw}", "s_cselect_b32 s96, 0, s96", "s_memrealtime s[98:99]", "s_waitcnt lgkmcnt(0)", "L_AMP:", "s_sleep 1",
               "s_memrealtime s[100:101]", "s_waitcnt lgkmcnt(0)", "s_sub_u32 s100, s100, s98", "s_cmp_lt_u32 s100, s96", "s_cbranch_scc1 L_AMP"])

def gen(cfg):
    global FSTR
    FSTR = cfg.get('fstr', 128)
    PS = cfg.get('ps', 4)
    a = Asm()
    st = Stamps(a, cfg)
    cold = []

    def slot_u(g): return 4 * (3 - (g & 3))
    w3u = [16, 17, 18, 12, 13, 14, 15, 11]
    GW_LDS = U(19)
    QSTAGE = U(10)
    STG = U(4)
    NPRE = 3

    QA, QB = 4, 8
    PL = 12
    KBUF = [24, 28]
    CA, CB = 32, 48
    S = [64, 88]
    T = 104
    V0B = [120, 124]
    V1B = [128, 132]
    CX = 136
    IDX, ADR, ADA, GV, QST, NI = 152, 153, 154, 155, 156, 157
    OA, OB = 160, 176
    OFB = 192
    OUTA, WOV, F3A, FPA, SYR = 243, 244, 245, 246, 247
    DF, DG, DA, DGA = 224, 240, 241, 242

    chosen = cfg.get("_chosen", {})
    def cand(name):
        if name in chosen:
            return [f"CD_{name}:", f"s_branch SK_{name}", ".p2align 12", f"PG_{name}:", "s_setpc_b64 s[100:101]", f"SK_{name}:"]
        return [f"CD_{name}:"]
    def touch(wreg, prefixes):
        if not cfg.get("stubs", 1): return
        names = [n for n in chosen if any(n.startswith(p) for p in prefixes)] + ["J", "K"]
        for w in range(4):
            mine = names[w::4]
            lb = a.label("tc")
            nslot = 3 if w < 2 else 2
            assert len(mine) <= nslot, names
            calls = [f"s_call_b64 s[100:101], PG_{n}" for n in mine] + ["s_nop 0"] * (nslot - len(mine))
            a([f"s_cmp_lg_u32 s{wreg}, {3 - w}", f"s_cbranch_scc1 {lb}"] + calls + [f"{lb}:"])

    def srd(d, base, nbytes):
        return [f"s_mov_b32 s{d}, s{base}", f"s_mov_b32 s{d+1}, s{base+1}", f"s_mov_b32 s{d+2}, {hex(nbytes)}", f"s_mov_b32 s{d+3}, 0x20000"]
    def common_setup():
        L = [srd(SWS, 82, WS_BYTES), srd(SDBG, 80, 256), srd(SOUT, 78, 2048 * 512 * 2), srd(SWOA, 68, 512 * 512 * 2), srd(SWOB, 74, 512 * 512 * 2)]
        L.append([f"s_lshl_b32 s{HEAD}, s{HG}, 2", "s_bfe_u32 s60, s2, 0x20003", f"s_add_u32 s{HEAD}, s{HEAD}, s60",
                  f"s_lshr_b32 s{QR}, s2, 5", f"s_lshl_b32 s{QT}, s{QR}, 3", f"s_add_u32 s{QT}, s{QT}, s{WV}"])
        return L

    def p2_setup():
        L = []
        L += [(0, [l]) for l in ["v_bfe_u32 v16, v0, 2, 2", "v_lshrrev_b32 v17, 5, v0", "v_lshl_add_u32 v16, v17, 2, v16",
              "v_lshlrev_b32 v16, 7, v16", "v_bfe_u32 v17, v0, 4, 1", "v_lshlrev_b32 v17, 1, v17", "v_bfe_u32 v18, v0, 1, 1",
              "v_or_b32 v17, v17, v18", "v_bfe_u32 v18, v0, 3, 1", "v_lshl_or_b32 v17, v18, 2, v17"]]
        L += [(0, [l]) for l in ["v_lshl_add_u32 v16, v17, 4, v16", "v_and_b32 v18, 1, v0", "v_lshl_add_u32 v16, v18, 3, v16"]]
        L.append((0, [f"s_lshr_b32 s58, s{WV}, 1", "s_lshl_b32 s58, s58, 14", "v_add_u32 v16, s58, v16"]))
        L += [(0, [l]) for l in ["v_xor_b32 v17, 64, v16", "v_add_u32 v18, 0x10000, v16", "v_add_u32 v19, 0x10000, v17"]]
        L.append((0, ["v_lshrrev_b32 v3, 5, v0", "v_mul_u32_u24 v3, 40, v3", "v_sub_u32 v3, v0, v3"]))
        for r in range(16):
            L.append((0, [f"v_cmp_le_i32 {sr(MK+2*r,2)}, {16*(r>>3) + (r&7)}, v3"]))
        L.append((4, ["v_and_b32 v3, 0x1b, v0", "v_cmp_eq_u32 vcc, 16, v3", "v_mov_b32 v3, 0x3f803f80",
                  f"s_mov_b32 s{VMASK}, 0xffff", f"s_mov_b32 s{VMASK+1}, 0xffff",
                  f"v_cndmask_b32 v{V0B[0]}, 0, v3, vcc", f"v_cndmask_b32 v{V0B[0]+1}, 0, v3, vcc"]))
        for i in range(1, 8):
            L.append((4, [f"v_mov_b64 {vr(V0B[0]+2*i,2)}, {vr(V0B[0],2)}"]))
        L.append((10, [f"v_mov_b32 v{NI}, {hex(NEG_INF)}"]))
        for r in range(16):
            L.append((10, [f"v_cndmask_b32 v{CX+r}, v{NI}, 0, {sr(MK+2*r,2)}"]))
        L.append((10, [f"v_mov_b32 v{IDX}, 0xdddddddd"]))
        L.append((10, [f"v_mov_b32 v{ADR}, v2"]))
        L.append((10, [f"s_lshl_b32 s58, s{WV}, 11", f"s_add_u32 s58, s58, {A_LDS}", f"v_add_u32 v{ADA}, s58, v2"]))
        L.append((10, [f"s_lshl_b32 s58, s{WV}, 10", f"s_add_u32 s58, s58, {QSTAGE}", f"v_add_u32 v{QST}, s58, v2"]))
        L.append((10, [f"s_lshl_b32 s58, s{QR}, 1", "v_add_u32 v158, s58, v0"]))
        L.append((10, ["v_and_b32 v158, 15, v158"]))
        L.append((10, [f"s_and_b32 s58, s{WV}, 1", "s_lshl_b32 s58, s58, 6", f"s_lshr_b32 s59, s{WV}, 1", "s_add_u32 s58, s58, s59",
                       "v_lshl_add_u32 v158, v158, 2, s58"]))
        L.append((10, ["v_and_b32 v159, 1, v0"]))
        L.append((10, [f"s_lshl_b32 s58, s{QR}, 3", f"s_lshl_b32 s59, s{WV}, 1", "s_add_u32 s58, s58, s59", "s_sub_i32 s58, s58, 8",
                       "s_max_i32 s58, s58, 0", "s_add_u32 s58, s58, 1024", "v_add_u32 v159, s58, v159"]))
        L.append((10, ["v_bfe_u32 v3, v0, 1, 1"]))
        L.append((10, ["v_lshl_add_u32 v159, v3, 6, v159"]))
        L.append((10, ["v_cmp_gt_u32 vcc, 16, v0", "v_and_b32 v3, 1, v0", "v_mul_u32_u24 v3, 1088, v3", "v_cndmask_b32 v158, v159, v158, vcc"]))
        L.append((10, ["v_bfe_u32 v159, v0, 1, 1", "v_lshl_add_u32 v3, v159, 6, v3"]))
        L.append((10, ["v_cmp_le_u32 vcc, 20, v0", f"s_add_u32 s58, s{QT}, 1024", "v_add_u32 v159, s58, v3", "s_nop 0",
                       "v_cndmask_b32 v158, v158, v159, vcc"]))
        for i in range(16):
            L.append((18, [f"v_mov_b64 {vr(OA+2*i,2)}, 0"]))
        L.append((18, ["v_lshrrev_b32 v159, 3, v0", "v_bfe_u32 v3, v0, 4, 1"]))
        L.append((18, ["v_lshlrev_b32 v3, 2, v3", "v_xor_b32 v3, v3, v0"]))
        L.append((18, ["v_and_b32 v3, 7, v3", "v_lshlrev_b32 v3, 4, v3"]))
        L.append((25, ["v_and_b32 v20, 15, v0", "v_lshrrev_b32 v21, 5, v0", "v_xor_b32 v20, v20, v21"]))
        L.append((25, ["v_and_b32 v21, 31, v0", "v_lshlrev_b32 v21, 8, v21", "v_lshl_add_u32 v20, v20, 4, v21"]))
        L.append((25, [f"s_lshl_b32 s58, s{WV}, 13", "s_add_u32 s58, s58, 0x10000", "v_add_u32 v20, s58, v20"]))
        L.append((25, ["v_lshrrev_b32 v21, 3, v0", f"s_lshl_b32 s58, s{WV}, 3", "v_add_u32 v21, s58, v21"]))
        L.append((25, ["v_and_b32 v22, 7, v0", "v_lshlrev_b32 v22, 1, v22", "v_xor_b32 v22, v22, v21"]))
        L.append((25, ["v_and_b32 v22, 15, v22", "v_lshlrev_b32 v22, 4, v22", "v_lshl_add_u32 v22, v21, 8, v22"]))
        L.append((25, ["v_add_u32 v22, 0x10000, v22", "v_xor_b32 v23, 16, v22"]))
        L.append((31, [f"v_and_b32 v{OUTA}, 7, v0", f"v_lshlrev_b32 v{OUTA}, 4, v{OUTA}", f"v_lshl_add_u32 v{OUTA}, v21, 10, v{OUTA}"]))
        L.append((32, [f"v_bfe_u32 v{SYR}, v0, 2, 1", f"v_lshlrev_b32 v{SYR}, 7, v{SYR}", f"v_and_or_b32 v{SYR}, v0, 3, v{SYR}",
                       f"v_lshlrev_b32 v{SYR}, 2, v{SYR}", f"v_add_u32 v{SYR}, {A_LDS}, v{SYR}"]))
        L.append((32, [f"v_lshl_add_u32 v{WOV}, v159, 10, v3"]))
        L.append((32, [f"v_mul_u32_u24 v{FPA}, {FSTR}, v158"]))
        L.append((32, [f"v_mul_u32_u24 v{F3A}, {FSTR}, v0"]))
        return L

    def poll_check(mask, vdata, again, tag):
        lp = a.label(tag); dn = a.label(tag + "d")
        a([f"s_mov_b64 exec, {hex(mask)}", f"v_cmp_ne_u64 vcc, s[{NON}:{NON+1}], {vr(vdata,2)}", f"s_cbranch_vccnz {lp}", f"{dn}:",
           "s_mov_b64 exec, -1"])
        def slowp():
            l2 = a.label(tag + "r")
            a([f"{lp}:", f"s_mov_b32 s62, {SPIN_MAX}", f"{l2}:"] + again +
              ["s_waitcnt vmcnt(0)", f"v_cmp_ne_u64 vcc, s[{NON}:{NON+1}], {vr(vdata,2)}", "s_sub_u32 s62, s62, 1",
               f"s_cbranch_scc1 {dn}", f"s_cbranch_vccnz {l2}", f"s_branch {dn}"])
        cold.append(slowp)
    def nonce_load(vd, vz):
        a(["s_mov_b64 exec, 1", f"buffer_load_dwordx2 {vr(vd,2)}, v{vz}, {S4(SDBG)}, 0 offen sc1", "s_mov_b64 exec, -1"])
    def nonce_get(vd, vz):
        lp = a.label("np"); dn = a.label("nd")
        a([f"v_readfirstlane_b32 s{NON}, v{vd}", f"v_readfirstlane_b32 s{NON+1}, v{vd+1}", f"s_cmp_eq_u32 s{NON}, 0",
           f"s_cbranch_scc1 {lp}", f"{dn}:"])
        def slowp():
            l2 = a.label("nr")
            a([f"{lp}:", f"s_mov_b32 s62, {SPIN_MAX}", f"{l2}:", "s_sleep 2"])
            nonce_load(vd, vz)
            a(["s_waitcnt vmcnt(0)", f"v_readfirstlane_b32 s{NON}, v{vd}", f"v_readfirstlane_b32 s{NON+1}, v{vd+1}",
               "s_sub_u32 s62, s62, 1", f"s_cbranch_scc1 {dn}", f"s_cmp_eq_u32 s{NON}, 0", f"s_cbranch_scc1 {l2}", f"s_branch {dn}"])
        cold.append(slowp)

    def store_setup(wreg, AS, half=None, ren=None):
        L = store_setup0(wreg, AS, half)
        if ren:
            import re
            L = [[re.sub(r"\bs(16|17|18|19|20)\b", lambda m: f"s{ren[int(m.group(1))]}", l) for l in g] for g in L]
        return L
    def store_setup0(wreg, AS, half=None):
        L = [[f"s_lshl_b32 s16, s{MT}, 2", f"s_add_u32 s16, s16, s{wreg}", f"s_lshl_b32 s17, s{HG}, 8", "s_add_u32 s17, s17, s16"],
             ["s_lshl_b32 s18, s17, 11", f"s_add_u32 s18, s18, {hex(KV_OFF)}", "s_lshl_b32 s19, s17, 10", f"s_xor_b32 s20, s{HALF}, 1"],
             ["s_lshl_b32 s20, s20, 21", "s_add_u32 s19, s19, s20", f"s_lshl_b32 s11, s{HG}, 1", f"s_add_u32 s11, s11, s{HALF}"],
             ["s_lshl_b32 s11, s11, 6", "s_add_u32 s11, s11, s16", f"s_mul_i32 s11, s11, {FSTR}", f"s_add_u32 s11, s11, {hex(FP_OFF)}"]]
        k0 = [[f"v_and_b32 v{AS}, 0x33, v0", "v_bfe_u32 v3, v0, 2, 1"], [f"v_lshl_or_b32 v{AS}, v3, 3, v{AS}", "v_bfe_u32 v3, v0, 3, 1"],
              [f"v_lshl_or_b32 v{AS}, v3, 2, v{AS}", f"v_lshlrev_b32 v{AS}, 4, v{AS}"], ["s_mov_b32 s26, 0x20000", "s_mov_b32 s27, 0x20000"]]
        k1 = [[f"v_and_b32 v{AS}, 0x2f, v0", f"v_lshlrev_b32 v{AS}, 4, v{AS}"], ["v_bfe_u32 v3, v0, 4, 1", f"v_lshl_add_u32 v{AS}, v3, 17, v{AS}"],
              [f"v_add_u32 v{AS}, 1024, v{AS}"], ["s_mov_b32 s26, 256", "s_mov_b32 s27, 0x3ff00"]]
        if half is not None:
            return L + (k0 if half == 0 else k1)
        lb = a.label("sv")
        return L + k0 + [[f"s_cmp_eq_u32 s{HALF}, 0", f"s_cbranch_scc1 {lb}"]] + k1 + [[f"{lb}:"]]

    a([f".globl {KNAME}", ".p2align 12", ".p2align 8", f".type {KNAME},@function", f"{KNAME}:"])
    a(["s_load_dwordx16 s[64:79], s[0:1], 0", "s_load_dwordx4 s[80:83], s[0:1], 64",
       "v_lshrrev_b32 v1, 6, v0", "s_cmp_ge_u32 s2, 256", "s_cbranch_scc1 L_END",
       f"v_readfirstlane_b32 s{WV}, v1", "v_and_b32 v0, 63, v0",
       f"s_and_b32 s{HG}, s2, 7", f"s_lshr_b32 s{MT}, s2, 4", f"s_bfe_u32 s{HALF}, s2, 0x10003"])
    st(0)
    a([f"s_cmp_ge_u32 s{WV}, 4", "s_cbranch_scc0 L_CONS"])

    LW = 84
    if cfg.get("lprio", 1) == 2: a("s_setprio 3")
    a([f"s_and_b32 s{LW}, s{WV}, 3",
       {1: [f"s_lshl_b32 s60, s{HALF}, 2", f"s_add_u32 s{ROT}, s{MT}, s60", f"s_add_u32 s{ROT}, s{ROT}, s{HG}", f"s_and_b32 s{ROT}, s{ROT}, 7"],
        4: [f"s_add_u32 s{ROT}, s{MT}, s{HG}", f"s_and_b32 s{ROT}, s{ROT}, 7"],
        5: [f"s_and_b32 s{ROT}, s{MT}, 7"],
        6: [f"s_and_b32 s{ROT}, s{MT}, 3", f"s_lshl_b32 s{ROT}, s{ROT}, 1", f"s_add_u32 s{ROT}, s{ROT}, s{HG}", f"s_and_b32 s{ROT}, s{ROT}, 7"],
        }[cfg.get("rot", 1)],
       "v_lshrrev_b32 v1, 3, v0", "v_bfe_u32 v3, v0, 4, 2",
       "v_xor_b32 v4, v0, v3", "v_and_b32 v4, 7, v4", "v_lshlrev_b32 v4, 4, v4",
       "v_lshl_add_u32 v4, v1, 10, v4",
       f"s_lshl_b32 s85, s{MT}, 17", f"s_lshl_b32 s86, s{LW}, 15", "s_add_u32 s85, s85, s86",
       "v_add_u32 v8, s85, v4", "v_xor_b32 v9, 64, v8", "v_add_u32 v9, 7168, v9",
       "v_add_u32 v10, 14336, v8", "v_add_u32 v11, 14336, v9",
       "v_bfe_u32 v3, v0, 4, 1", "v_lshlrev_b32 v3, 2, v3", "v_xor_b32 v3, v0, v3", "v_and_b32 v3, 7, v3", "v_lshlrev_b32 v3, 4, v3",
       "v_mul_u32_u24 v5, 3072, v1", f"s_lshl_b32 s86, s{HG}, 7", "v_add3_u32 v12, v3, v5, s86",
       f"v_add_u32 v13, {8*3072-1024}, v12", f"v_add_u32 v14, {2*(8*3072-1024)}, v12", f"v_add_u32 v15, {3*(8*3072-1024)}, v12",
       f"s_lshl_b32 s88, s{HALF}, 10", "s_add_u32 s88, s88, 1024",
       f"s_and_b32 s86, s{LW}, 1", f"s_mul_i32 s86, s86, {32*3072}",
       f"s_cmp_lt_u32 s{LW}, 2", "s_cselect_b32 s85, s88, 0", "s_add_u32 s85, s85, s86",
       f"s_lshl_b32 s87, s{LW}, 12",
       f"s_lshr_b32 s86, s{LW}, 1", f"s_and_b32 s86, s86, s{HALF}",
       f"s_mov_b32 s{SX+2}, {hex(2048*512*2)}", f"s_mov_b32 s{SX+3}, 0x20000",
       f"s_mov_b32 s{SWL+2}, {hex(512*1536*2)}", f"s_mov_b32 s{SWL+3}, 0x20000",
       f"s_mov_b32 s89, s{ROT}",
       "s_waitcnt lgkmcnt(0)",
       f"s_mov_b32 s{SX}, s64", f"s_mov_b32 s{SX+1}, s65",
       "s_cmp_eq_u32 s86, 0", f"s_cselect_b32 s{SWL}, s72, s66", f"s_cselect_b32 s{SWL+1}, s73, s67"])
    order = []
    def issue_half(h):
        g, w = divmod(h, 2)
        u = U(slot_u(g))
        if w == 0:
            a([f"s_add_u32 m0, s87, {u}", "s_lshl_b32 s90, s89, 7"])
            for v in range(4):
                a(f"buffer_load_dwordx4 v{8+v}, {S4(SX)}, s90 offen offset:{v*1024} lds"); order.append(g)
        else:
            a([f"s_mul_i32 s90, s89, {64*3072}", f"s_add_u32 m0, s87, {u + 16384}", "s_add_u32 s90, s90, s85"])
            for v in range(4):
                a(f"buffer_load_dwordx4 v{12+v}, {S4(SWL)}, s90 offen offset:{v*1024} lds"); order.append(g)
            a(["s_add_u32 s89, s89, 1", "s_and_b32 s89, s89, 7"])
    PLAN = {0: [4, 7, 10, 12, 14, 16, 16], 1: [4, 6, 8, 10, 13, 16, 16], 2: [4, 6, 9, 12, 14, 16, 16], 3: [3, 6, 9, 12, 14, 16, 16],
            4: [5, 8, 10, 12, 14, 16, 16], 5: [2, 5, 8, 11, 14, 16, 16], 6: [4, 6, 8, 10, 12, 14, 16], 7: [6, 8, 10, 12, 14, 16, 16], 8: [5, 7, 9, 11, 13, 15, 16]}[cfg.get("plan", 2)]
    nh = 0
    while nh < PLAN[0]:
        issue_half(nh); nh += 1
    W3S = 6 if PLAN[5] < 16 else 5
    LAS, LZ, LPA = 40, 41, 42
    a("s_branch L_LOAD2")
    a("L_CONS:")
    XA, WL, WA, AS, AF, NV = 4, 8, 10, 12, 13, 20
    WR, ACC, XF = 24, 56, 120
    def code_prefetch(base_expr, per_wg, vt, dst):
        return ["s_getpc_b64 s[86:87]"] + base_expr + [
                f"v_mul_u32_u24 v{vt}, {per_wg // 64}, v0", f"v_add_u32 v{vt}, s88, v{vt}", f"v_min_u32 v{vt}, s89, v{vt}",
                f"v_mov_b32 v{vt+1}, s87", f"v_add_co_u32 v{vt}, vcc, s86, v{vt}", "s_nop 1",
                f"v_addc_co_u32 v{vt+1}, vcc, 0, v{vt+1}, vcc", f"global_load_dword v{dst}, {vr(vt,2)}, off"]
    if cfg.get("prefc", 1):
        a(code_prefetch(["s_lshr_b32 s88, s2, 3", "s_lshl_b32 s88, s88, 2", f"s_add_u32 s88, s88, s{WV}", "s_mul_i32 s88, s88, 384",
                         "s_mov_b32 s89, CODE_LEFT", "s_mov_b64 exec, 7"], 128 * 64, 24, 249))
        a("s_mov_b64 exec, -1")
    KT, SG, XO = 15, 61, 16
    a([f"s_lshr_b32 s{SG}, s{WV}, 1", f"s_and_b32 s{KT}, s{WV}, 1", f"s_lshl_b32 s{KT}, s{KT}, 1", f"s_add_u32 s{KT}, s{KT}, s{SG}",
       "v_and_b32 v1, 31, v0", "v_lshrrev_b32 v25, 5, v0", "v_bfe_u32 v3, v0, 1, 3", "v_xor_b32 v26, v25, v3", "v_lshlrev_b32 v26, 4, v26",
       "v_lshl_add_u32 v26, v1, 7, v26", f"s_lshl_b32 s86, s{KT}, 12", f"s_add_u32 s86, s86, {U(slot_u(0))}",
       f"v_add_u32 v{XA}, s86, v26", f"v_xor_b32 v{XA+1}, 32, v{XA}", f"v_xor_b32 v{XA+2}, 64, v{XA}", f"v_xor_b32 v{XA+3}, 96, v{XA}"] +
      [f"v_xor_b32 v{XO+k}, 0x1000, v{XA+k}" for k in range(4)] +
      ["v_bfe_u32 v26, v0, 2, 2", "v_lshl_add_u32 v26, v25, 3, v26", "v_lshlrev_b32 v26, 7, v26",
       "v_bfe_u32 v27, v0, 4, 1", "v_lshlrev_b32 v27, 1, v27", "v_bfe_u32 v28, v0, 1, 1", "v_or_b32 v27, v27, v28",
       "v_bfe_u32 v28, v0, 3, 1", "v_lshl_or_b32 v27, v28, 2, v27", "v_lshl_add_u32 v26, v27, 4, v26", "v_and_b32 v28, 1, v0",
       f"v_lshl_add_u32 v{WL}, v28, 3, v26", f"v_xor_b32 v{WL+1}, 64, v{WL}",
       f"s_lshl_b32 s86, s{SG}, 13", f"s_add_u32 s86, s86, {U(slot_u(0)+2)}",
       f"v_add_u32 v{WA}, s86, v{WL}", f"v_add_u32 v{WA+1}, s86, v{WL+1}",
       "v_lshlrev_b32 v14, 4, v25", f"v_mov_b32 v{AF}, 0", "s_waitcnt lgkmcnt(0)"])
    a(srd(SDBG, 80, 256))
    lab = a.label("nn")
    a([f"s_or_b32 s86, s{WV}, s2", "s_cmp_lg_u32 s86, 0", f"s_cbranch_scc1 {lab}",
       "s_memrealtime s[86:87]", "s_waitcnt lgkmcnt(0)", "s_or_b32 s86, s86, 1", f"v_mov_b32 v{NV}, s86", f"v_mov_b32 v{NV+1}, s87",
       "s_mov_b64 exec, 1", f"buffer_store_dwordx2 {vr(NV,2)}, v{AF}, {S4(SDBG)}, 0 offen sc1", "s_mov_b64 exec, -1", f"{lab}:"])

    touch(WV, ["C", "L", "P"])
    a([f"s_cmp_gt_u32 s{HALF}, s{SG}", "s_cbranch_scc1 L_AN", "s_branch L_AT"])
    a("L_LOAD2:")
    def lsetup(k):
        if k == 0:
            a(srd(SW3, 66, 512 * 1536 * 2) + srd(SGW, 76, 1024))
            for grp in common_setup(): a(grp)
        elif k == 1:
            a([f"v_add_u32 v4, s{ROT}, v1", "v_and_b32 v4, 7, v4", "v_lshlrev_b32 v4, 7, v4", "v_and_b32 v5, 7, v0",
               "v_lshl_add_u32 v4, v5, 4, v4", f"s_mov_b32 m0, {GW_LDS}", "v_lshlrev_b32 v2, 4, v0",
               f"buffer_load_dwordx4 v4, {S4(SGW)}, 0 offen lds"]); order.append(8)
            a([f"v_mov_b32 v{LZ}, 0", f"s_lshl_b32 s90, s{LW}, 13", f"s_add_u32 s90, s90, {STG}", "v_add_u32 v4, s90, v2"])
        elif k == 2:
            for grp in store_setup(LW, LAS, ren={16: 92, 17: 93, 18: 94, 19: 95, 20: 60}): a(grp)
        else:
            a([
               "v_lshrrev_b32 v5, 1, v0", f"s_lshl_b32 s90, s{QR}, 1", "v_add_u32 v5, s90, v5", "v_and_b32 v5, 15, v5",
               f"v_lshl_add_u32 v5, v5, 2, s{LW}", f"v_and_b32 v{LPA}, 1, v0", f"v_lshl_add_u32 v5, v{LPA}, 6, v5",
               f"s_lshl_b32 s90, s{LW}, 1", f"s_lshl_b32 s91, s{QR}, 3", "s_add_u32 s90, s90, s91", f"v_add_u32 v{LPA}, s90, v{LPA}",
               f"v_cmp_gt_u32 vcc, {2*NPRE}, v0", f"v_mov_b32 v{DA}, v2", f"v_mov_b32 v{DGA}, v2",
               f"v_cndmask_b32 v{LPA}, v{LPA}, v5, vcc", f"v_mul_u32_u24 v{LPA}, {FSTR}, v{LPA}"])
    st(1)
    for s in range(8):
        last = max(i for i, tg in enumerate(order) if tg == s)
        assert order.count(s) == 8
        if cfg.get("dbgA") == 2 and s > 0: st(7 + s, True)
        a(f"s_waitcnt vmcnt({len(order) - 1 - last})")
        if cfg.get("dbgA") == 1 and s > 0: st(7 + s, True)
        a("s_barrier")
        if s == 0: st(2)
        while s < 6 and nh < PLAN[s + 1]:
            assert nh // 2 <= s + 3
            issue_half(nh); nh += 1
        if s in (0, 3, 4, 7): lsetup((0, 3, 4, 7).index(s))
        if s == 5:
            nonce_load(6, LZ); order.append(8)
        if s in (W3S, W3S + 1):
            q = s - W3S
            tab = sum(w3u[4*q + k] << (8*k) for k in range(4))
            a([f"s_lshl_b32 s90, s{LW}, 3", f"s_lshr_b32 s91, {hex(tab)}, s90", "s_and_b32 s91, s91, 0xff", "s_lshl_b32 s91, s91, 13",
               f"s_add_u32 s90, s{ROT}, s{LW}"] + ([f"s_add_u32 s90, s90, {4*q}"] if q else []) + ["s_and_b32 s90, s90, 7",
               f"s_mul_i32 s90, s90, {64*3072}", "s_mov_b32 m0, s91", "s_add_u32 s90, s90, s88"])
            for hh in range(2):
                if hh: a(["s_add_u32 m0, s91, 4096", f"s_add_u32 s90, s90, {32*3072}"])
                for v in range(4):
                    a(f"buffer_load_dwordx4 v{12+v}, {S4(SW3)}, s90 offen offset:{v*1024} lds"); order.append(8)
    ps = [g for _, g in p2_setup()]
    is_mask = lambda g: any(("v_cmp_le_i32" in l) or (f"v_cndmask_b32 v" in l and ", 0, s[" in l) or ("v_mul_u32_u24 v3, 40" in l) for l in g)
    ps_mask = [g for g in ps if is_mask(g)]
    for k_, grp in enumerate(g for g in ps if not is_mask(g)):
        a(grp)
        if k_ % 16 == 15: a(cand(f"L{k_}"))
    ltag = ["s_getreg_b32 s61, hwreg(HW_REG_XCC_ID, 0, 4)", "s_add_u32 s61, s61, 1", "s_lshl_b32 s61, s61, 24",
            f"s_xor_b32 s61, s61, s{NON+1}", f"s_mov_b32 s60, s{NON}"]
    a(["s_add_u32 s23, s94, 0x400000", "s_mov_b32 s28, s95", "s_mov_b32 s29, 0x10000", "s_mov_b32 s30, 0x10000",
       f"s_add_u32 s31, s11, {2*1024*FSTR}", f"s_mov_b32 s25, s{HALF}",
       f"s_mul_i32 s16, s{HG}, {128*FSTR}", f"s_add_u32 s16, s16, {hex(FP_OFF)}",
       f"s_lshl_b32 s18, s{LW}, 11",
       f"s_lshl_b32 s17, s{HEAD}, 17", f"s_add_u32 s17, s17, {hex(KV_OFF + (4 << 20))}", "s_add_u32 s17, s17, s18",
       f"s_lshl_b32 s20, s{QR}, 3", f"s_lshl_b32 s19, s{HEAD}, 6", "s_add_u32 s19, s19, s20", "s_lshl_b32 s19, s19, 10",
       "s_add_u32 s19, s19, s18", f"s_add_u32 s19, s19, {hex(QF_OFF + (2 << 20))}",
       f"s_add_u32 s20, s11, {3*1024*FSTR}", f"s_add_u32 s22, s16, {3*1024*FSTR}", "s_waitcnt vmcnt(8)"])
    nonce_get(6, LZ)
    a(ltag + ["v_mov_b32 v8, s60", "v_mov_b32 v9, s61", "s_setprio 3"])
    a(cand("Lb"))
    a("s_barrier")
    for k in range(8):
        a(f"ds_read_b128 {vr(24+4*k if k < 4 else DF+4*(k-4),4)}, v4 offset:{k*1024}")
    def stores(fl, first=False):
        lb = a.label("q0")
        a("s_mov_b32 s21, s23")
        for k in range(4):
            if first: a(f"s_waitcnt lgkmcnt({7-k})")
            a([f"buffer_store_dwordx4 {vr(24+4*k,4)}, v{LAS}, {S4(SWS)}, s21 offen{fl}", f"s_add_u32 s21, s21, s{26 + (k & 1)}"])
        a(["s_mov_b32 s21, s28"] + (["s_waitcnt lgkmcnt(0)"] if first else []) + [f"s_cmp_lg_u32 s{HALF}, 0", f"s_cbranch_scc1 {lb}"])
        for k in range(4):
            a([f"buffer_store_dwordx4 {vr(DF+4*k,4)}, v2, {S4(SWS)}, s21 offen{fl}", "s_add_u32 s21, s21, 0x10000"])
        a(f"{lb}:")
    stores("", True)
    st(3)
    gflag = ["s_mov_b64 exec, 1", f"buffer_store_dwordx2 v[6:7], v{LZ}, {S4(SWS)}, s11 offen sc1"]
    a(["s_waitcnt vmcnt(0)", "s_mov_b64 exec, 1", f"buffer_store_dwordx2 v[8:9], v{LZ}, {S4(SWS)}, s20 offen"])
    st(5)
    pm = f"s_mov_b64 exec, {hex((1 << (2*NPRE+2)) - 1)}"
    def pq(k): return f"buffer_load_dwordx2 {vr(44+2*k,2)}, v{LPA}, {S4(SWS)}, s22 offen sc1"
    PQ = cfg.get("pq", 2)
    a([pm, f"s_mov_b32 s62, {cfg.get('locn', 8)}", pq(0), "s_barrier", pq(1), f"s_sleep {PQ}", "L_FL:"])
    for k in range(3):
        a([pq((k + 2) % 3), "s_waitcnt vmcnt(2)", f"v_cmp_ne_u64 vcc, s[60:61], {vr(44+2*k,2)}", "s_cbranch_vccz L_F0D", f"s_sleep {PQ}"])
    a(["s_sub_u32 s62, s62, 1", "s_cbranch_scc0 L_FL", "s_branch L_FG", "L_F0D:", "s_mov_b64 exec, -1"])
    def fg():
        a(["L_FG:", "s_mov_b64 exec, -1"])
        stores(" sc1")
        a(["s_waitcnt vmcnt(0)"] + gflag + [pm, f"s_mov_b32 s62, {SPIN_MAX}", "L_FG2:",
           f"buffer_load_dwordx2 v[44:45], v{LPA}, {S4(SWS)}, s16 offen sc1", "s_waitcnt vmcnt(0)",
           f"v_cmp_ne_u64 vcc, s[{NON}:{NON+1}], v[44:45]", "s_sub_u32 s62, s62, 1", "s_cbranch_scc1 L_F0D",
           "s_cbranch_vccz L_F0D", f"s_sleep {PS}", "s_branch L_FG2"])
    cold.append(fg)
    st(4)
    a([f"s_add_u32 m0, s18, {QSTAGE}", f"s_lshl_b32 s22, s{QR}, 14"])
    for v in range(2):
        a(f"buffer_load_dwordx4 v2, {S4(SWS)}, s19 offen offset:{v*1024} sc1 lds")
    for pc in range(NPRE):
        a([f"s_add_u32 m0, s18, {pc*8192}", "s_add_u32 s21, s22, s17"])
        for v in range(2):
            a(f"buffer_load_dwordx4 v2, {S4(SWS)}, s21 offen offset:{v*1024} sc1 lds")
        if pc < NPRE - 1: a(["s_add_u32 s22, s22, 8192", "s_and_b32 s22, s22, 0x1ffff"])
    a("s_setprio 0")
    if cfg.get("rsd", 1):
        for grp in ps_mask: a(grp)
        stores(" sc1")
    else:
        stores(" sc1")
        for grp in ps_mask: a(grp)
    a(["s_waitcnt vmcnt(0)"] + gflag + ["s_mov_b64 exec, -1", "s_branch L_P2", "CD_Lz:"])

    def mm(acc, w, x, swap, first):
        A_ = vr(acc, 16)
        c = "0" if first else A_
        return f"{MFMA} {A_}, {x}, {w}, {c}" if swap else f"{MFMA} {A_}, {w}, {x}, {c}"
    def passA(swap):
        ss = store_setup(KT, AS)
        fillA = common_setup() + [["v_lshlrev_b32 v2, 4, v0"]] + ss[:4] + [sum(ss[4:], [])] + [
            [f"s_lshl_b32 s24, s{HG}, 13", "s_lshl_b32 s25, s16, 7", "s_add_u32 s24, s24, s25", f"s_lshl_b32 s25, s{HALF}, 16",
             "s_add_u32 s24, s24, s25", f"s_add_u32 s24, s24, {hex(G_OFF)}"],
            [f"v_add_u32 v14, {GW_LDS}, v14", f"s_mov_b32 s22, {hex(f32(QSCALE))}", f"s_mov_b32 s23, {hex(f32(QSCALE))}"],
            [f"s_lshl_b32 s21, s{KT}, 1", f"s_add_u32 s21, s21, s{SG}", "s_lshl_b32 s21, s21, 12", f"s_add_u32 s21, s21, {STG}", "v_add_u32 v15, s21, v2"]]
        mk = [g for _, g in p2_setup() if any(("v_cmp_le_i32" in l) or ("v_mul_u32_u24 v3, 40" in l) for l in g)]
        fillA += [mk[0]] + [mk[1 + 2*k] + mk[2 + 2*k] for k in range(8)]
        XT = WR + 16
        def readsA(c, ks):
            i = c*4 + ks
            b = WR + (i & 1) * 8
            tr = [f"ds_read_b64_tr_b16 {vr(b+f*4+t*2,2)}, v{WA+f} offset:{ks*2048+t*512}" for f in range(2) for t in range(2)]
            return [f"ds_read_b128 {vr(XF+i*4,4)}, v{XA+ks}"] + tr + [f"ds_read_b128 {vr(XT+(i&1)*4,4)}, v{XO+ks}"]
        if cfg.get("prefx", 0):
            a(srd(SX, 64, 2048 * 512 * 2) + [f"s_lshl_b32 s86, s{HALF}, 2", f"s_add_u32 s86, s86, s{MT}", f"s_add_u32 s86, s86, s{HG}",
               f"s_add_u32 s86, s86, {cfg['prefx']}", "v_lshrrev_b32 v24, 5, v0", "v_add_u32 v24, s86, v24", "v_and_b32 v24, 7, v24",
               "v_lshlrev_b32 v24, 7, v24", "v_lshl_add_u32 v24, v1, 10, v24", f"s_lshl_b32 s86, s{MT}, 2", f"s_add_u32 s86, s86, s{WV}",
               "s_lshl_b32 s86, s86, 15", f"buffer_load_dword v248, v24, {S4(SX)}, s86 offen"])
        if cfg.get("pref", 1):
            a(srd(SW3, 66, 512 * 1536 * 2) + [f"s_lshl_b32 s86, s{MT}, 2", f"s_add_u32 s86, s86, s{WV}", f"s_mul_i32 s86, s86, {8*3072}",
               f"s_lshl_b32 s87, s{HG}, 7", "s_add_u32 s86, s86, s87", f"s_lshl_b32 s87, s{HALF}, 10", "s_add_u32 s86, s86, s87",
               "v_mul_u32_u24 v24, 3072, v0", "s_mov_b64 exec, 0xff", f"buffer_load_dword v248, v24, {S4(SW3)}, s86 offen offset:1024", "s_mov_b64 exec, -1"])
        st(1)
        a("s_barrier")
        st(2)
        pend = []
        def emit_rd(l, tag):
            a(l); pend.append(tag)
        def wait_for(step, idx):
            pos = max([k for k, tg in enumerate(pend) if tg <= (step, idx)], default=-1)
            if pos >= 0:
                n = len(pend) - 1 - pos
                assert n <= 15
                a(f"s_waitcnt lgkmcnt({n})")
                del pend[:pos + 1]
        for k, l in enumerate(readsA(0, 0)): emit_rd(l, (0, k))
        for c in range(8):
            for ks in range(4):
                i = c*4 + ks
                bnd = (ks == 3 and c < 7)
                rd = readsA(c + 1, 0) if bnd else (readsA(c, ks + 1) if ks < 3 else [])
                b = WR + (i & 1) * 8
                xs = [vr(XF + i*4, 4), vr(XT + (i & 1)*4, 4)]
                mf = [mm(ACC + o*32 + f*16, vr(b+f*4, 4), xs[o], swap, i == 0) for o in range(2) for f in range(2)]
                cuts = [0, 0, 3, 6, 6] if bnd else [0, 2, 4, 6, 6]
                need = [2, 5 if bnd else 4, 5, 5]
                for k, m in enumerate(mf):
                    wait_for(i, need[k])
                    a(m)
                    if bnd and k == 0:
                        d = U(slot_u(c + 1)) - U(slot_u(c))
                        for r in [XA, XO, WA, WA+1]:
                            a(f"v_add_u32 v{r}, {d}, v{r}" if d > 0 else f"v_subrev_u32 v{r}, {-d}, v{r}")
                    if bnd and k == 1:
                        if cfg.get("dbgA") == 2: st(8 + c, True)
                        a("s_barrier")
                        if cfg.get("dbgA") == 1: st(8 + c, True)
                    for q in range(cuts[k], cuts[k+1]):
                        if q < len(rd): emit_rd(rd[q], (i + 1, q))
                    if bnd and k == 3:
                        for r in [XA+1, XA+2, XA+3, XO+1, XO+2, XO+3]:
                            a(f"v_add_u32 v{r}, {d}, v{r}" if d > 0 else f"v_subrev_u32 v{r}, {-d}, v{r}")
                    if k == 3 and ks < 3 and fillA: a(fillA.pop(0))
                    if k == 3: a(cand(f"C{int(swap)}A{i}"))
        assert not fillA
        st(3)
        a(["v_xor_b32 v16, 0x2000, v15", "s_nop 7"])
        if not swap:
            lb = a.label("ns")
            a([f"s_cmp_eq_u32 s{SG}, 0", f"s_cbranch_scc1 {lb}"] +
              [f"v_pk_mul_f32 {vr(ACC+2*k,2)}, {vr(ACC+2*k,2)}, s[22:23]" for k in range(32)] + [f"{lb}:"])
        else:
            a("s_nop 1")
        for q in range(4):
            t = ACC + 16*q
            for k in range(8):
                a(f"v_cvt_pk_bf16_f32 v{t+k}, v{t+2*k}, v{t+2*k+1}")
                if k in (3, 7):
                    a(f"ds_write_b128 v{15 + (q >> 1)}, {vr(t+k-3,4)} offset:{(2*(q & 1) + (k >> 2))*1024}")
        nonce_load(NV, AF)
        a(["s_waitcnt lgkmcnt(0)", "s_barrier"])
        st(4)
    def consumer(half):
        GR, GACC = 88, 104
        GH = 0 if cfg.get('rot', 1) == 1 else half
        filler2 = [(m, g) for m, g in p2_setup() if not any(("v_cmp_le_i32" in l) or ("v_mul_u32_u24 v3, 40" in l) for l in g)]
        outstanding = []
        wbase = {"u": None}
        def readsB(i):
            c, ks = divmod(i, 4)
            u = w3u[c]
            out = []
            if wbase["u"] is None or not (0 <= u - wbase["u"] <= 3):
                wbase["u"] = u
                out += [f"v_add_u32 v{WA+f}, {U(u)}, v{WL+f}" for f in range(2)]
            wo = (u - wbase["u"]) * 8192
            for f in range(2):
                for t in range(2):
                    out.append(f"ds_read_b64_tr_b16 {vr(WR+(i%4)*8+f*4+t*2,2)}, v{WA+f} offset:{wo+ks*2048+t*512}")
                    outstanding.append(i)
            if i // 16 == GH:
                out.append(f"ds_read_b128 {vr(GR+(i%4)*4,4)}, v14 offset:{i*32}")
                outstanding.append(i)
            return out
        DB = 3
        for i in range(DB): a(readsB(i))
        for i in range(32):
            n = sum(1 for s_ in outstanding if s_ > i)
            a(f"s_waitcnt lgkmcnt({n})")
            outstanding[:] = [s_ for s_ in outstanding if s_ > i]
            if i == cfg.get("b9i", 7): a("s_barrier")
            if i == cfg.get("rb", -1):
                a(["v_and_b32 v4, 7, v0", "v_bfe_u32 v5, v0, 3, 2", "v_lshlrev_b32 v4, 7, v4", "v_lshl_add_u32 v6, v5, 17, v4",
                   f"s_add_u32 s58, s18, {0x400000 + 1024*half}", "s_mov_b32 exec_hi, 0",
                   f"buffer_load_dword v248, v6, {S4(SWS)}, s58 offen sc1"])
                if half == 0:
                    a(["v_lshl_add_u32 v6, v5, 16, v4", f"buffer_load_dword v249, v6, {S4(SWS)}, s19 offen sc1"])
                a("s_mov_b64 exec, -1")
            rd = readsB(i + DB) if i + DB < 32 else []
            x = vr(XF + i*4, 4)
            mf = [mm(ACC + f*16, vr(WR+(i%4)*8+f*4, 4), x, half == 1, i == 0) for f in range(2)]
            if i // 16 == GH:
                mf.append(mm(GACC, vr(GR+(i%4)*4, 4), x, False, i % 16 == 0))
            h_ = (len(rd) + 1) // 2
            for f, m in enumerate(mf):
                a(m)
                a(rd[f*h_:(f+1)*h_])
                for _ in range(2 if (len(mf) == 3 or len(filler2) > 2 * (31 - i) + 6) else 1):
                    if filler2 and filler2[0][0] <= i:
                        a(filler2.pop(0)[1])
            a(cand(f"C{half}B{i}"))
            if i == 24:
                a("s_waitcnt vmcnt(0)")
                nonce_get(NV, AF)
        for _, grp in filler2: a(grp)
        st(5)
        a([f"v_mov_b32 v{DA}, v{AS}", "s_mov_b32 s28, s18", "s_mov_b32 s29, s26", "s_mov_b32 s30, s27",
           f"s_add_u32 s31, s11, {1024*FSTR}", "s_mov_b32 s25, 2", f"v_lshlrev_b32 v{DGA}, 2, v1",
           "s_nop 4"])
        for k in range(16):
            a(f"v_cvt_pk_bf16_f32 v{DF+k}, v{ACC+2*k}, v{ACC+2*k+1}")
        a(f"v_mov_b32 v{DG}, v{GACC}")
    if cfg.get("stubs", 1): a(".p2align 12")
    a(["L_AT:", "CD_At:"])
    passA(False)
    a([f"s_cmp_lg_u32 s{HALF}, 0", "s_cbranch_scc1 L_B1"])
    consumer(0)
    a(["s_branch L_P2", "L_AN:"])
    passA(True)
    a("L_B1:")
    consumer(1)

    if cfg.get("stubs", 1): a(["s_branch L_P2", ".p2align 6", "PG_J:", "s_setpc_b64 s[100:101]"])
    a("; ---- P2: attention")
    a("L_P2:")
    KVA, KVB, DM = 16, 17, 18
    a([f"s_lshl_b32 s{KVA}, s{HEAD}, 17", f"s_add_u32 s{KVA}, s{KVA}, {hex(KV_OFF)}", f"s_add_u32 s{KVB}, s{KVA}, 0x400000",
       f"s_lshl_b32 s{DM}, s{WV}, 10", f"s_add_u32 s19, s{KVB}, s{DM}",
       f"s_lshl_b32 s22, s{QR}, 14", f"s_add_u32 s22, s22, {2*8192}",
       f"s_mul_i32 s21, s{HG}, {128*FSTR}", f"s_add_u32 s21, s21, {hex(FP_OFF)}"])
    a(ltag)
    fpoll = [f"buffer_load_dwordx2 {vr(PL,2)}, v{FPA}, {S4(SWS)}, s21 offen sc1"]
    lpoll = [f"s_add_u32 s58, s21, {3*1024*FSTR}", f"buffer_load_dwordx2 {vr(PL,2)}, v{FPA}, {S4(SWS)}, s58 offen sc1"]
    f3poll = [f"buffer_load_dwordx2 {vr(PL+2,2)}, v{F3A}, {S4(SWS)}, s53 offen sc1"]
    def masked(mask, lines):
        return [f"s_mov_b64 exec, {hex(mask)}"] + lines + ["s_mov_b64 exec, -1"]
    a(cand("Ph"))
    st(6)
    a("s_barrier")
    st(7)

    PA = 64
    assert PA % 2 == 0
    def isA(p): return PA <= p < PA + 9
    def btile(p): return p if p < PA else p - 9
    abase = {"b": 0}
    def koff(p):
        if isA(p):
            return ADA, (8 - (p - PA)) * 2048
        return ADR, btile(p) * 2048 - abase["b"]
    def rdK(p):
        r, o = koff(p)
        assert 0 <= o < 65536 - 2048
        return f"ds_read_b128 {vr(KBUF[p&1],4)}, v{r} offset:{o}"
    def rdV(p, g):
        r, o = koff(p)
        assert 0 <= o < 65536 - 2048
        return f"ds_read_b128 {vr((V0B if g == 0 else V1B)[p & 1],4)}, v{r} offset:{o+1024+256*g}"
    def Qof(p): return QA if isA(p) else QB
    def Cof(p): return CX if p in (PA, PA + 8) else (CA if isA(p) else CB)
    def Oof(p): return OA if isA(p) else OB

    def block(t, first=False, last=False, ins=None, xm=None):
        s = S[t & 1]
        I = {i: [] for i in range(16)}
        pos = (5, 8, 11) if xm else (4, 8, 12)
        if not first: I[pos[0]].append(f"{SMFMAC} {vr(Oof(t-1),16)}, {vr(V1B[(t-1)&1],4)}, {vr(S[(t-1)&1]+8,8)}, v{IDX}")
        if not last: I[pos[1]].append(f"{MFMA} {vr(S[(t+1)&1],16)}, {vr(KBUF[(t+1)&1],4)}, {vr(Qof(t+1),4)}, {vr(Cof(t+1),16)}")
        I[pos[2]].append(f"{SMFMAC} {vr(Oof(t),16)}, {vr(V0B[t&1],4)}, {vr(s,8)}, v{IDX}")
        if xm:
            I[2] += xm[0]; I[14] += xm[1]
        if cfg.get("tstamp") and t > 0:
            I[15].append(f"v_writelane_b32 v{252 + ((t-1) >> 6)}, s96, {(t-1) & 63}")
        for k, v in (ins or {}).items():
            I[k] += v
        for i in range(16):
            if i == 1: a("s_setprio 1")
            a(I[i])
            if i == 15: a("s_setprio 0")
            a(f"v_exp_f32 v{s+i}, v{s+i}")
    def tail(t, extra=None, xrd=(), pre=None):
        if pre: a(pre)
        n = len(xrd)
        if t + 3 <= 72:
            a(rdK(t+3)); n += 1
        a(list(xrd))
        a(f"s_mov_b64 exec, s[{VMASK}:{VMASK+1}]")
        if t + 1 <= 72:
            a(rdV(t+1, 1)); n += 1
        if t + 2 <= 72:
            a(rdV(t+2, 0)); n += 1
        a("s_mov_b64 exec, -1")
        if extra: a(extra)
        if cfg.get("tstamp"):
            a(["s_memtime s[96:97]", "s_waitcnt lgkmcnt(0)"])
        a(f"s_waitcnt lgkmcnt({n})")
    def submax(C):
        src, dst, tmp = S[0], T, T + 1
        a(f"v_max3_f32 v{dst}, v{src}, v{src+1}, v{src+2}")
        a(f"v_max3_f32 v{tmp}, v{src+3}, v{src+4}, v{src+5}")
        for i in range(6, 14, 4):
            a(f"v_max3_f32 v{dst}, v{dst}, v{src+i}, v{src+i+1}")
            a(f"v_max3_f32 v{tmp}, v{tmp}, v{src+i+2}, v{src+i+3}")
        a([f"v_max3_f32 v{dst}, v{dst}, v{src+14}, v{src+15}", f"v_max_f32 v{dst}, v{dst}, v{tmp}", f"v_mov_b32 v{tmp}, v{dst}", "s_nop 1",
           f"v_permlane32_swap_b32 v{dst}, v{tmp}", "s_nop 1",
           f"v_min_f32 v{C}, -v{dst}, -v{tmp}", f"v_min_f32 v{C+1}, -v{dst}, -v{tmp}"])
        for r in range(0, 16, 2):
            a(f"v_pk_add_f32 {vr(S[0]+r,2)}, {vr(S[0]+r,2)}, {vr(C,2)}")
            if r: a(f"v_mov_b64 {vr(C+r,2)}, {vr(C,2)}")
    def cfix(u):
        lb = a.label("cf"); bk = a.label("cb")
        a([f"s_cmp_eq_u32 s{QT}, {u-1}", f"s_cbranch_scc1 {lb}", f"{bk}:"])
        def f():
            a([f"{lb}:", "s_nop 7"] + [f"v_mov_b32 v{CA+r}, v{NI}" for r in range(16)] + ["s_nop 1", f"s_branch {bk}"])
        cold.append(f)

    def slow(br):
        Q = QA if br == 0 else QB
        O = OA if br == 0 else OB
        M, AD, BASE, TM = 236, 237, 238, 239
        C, SS, KK, V0, V1 = (CB, 192, 224, 228, 232) if br == 1 else (CX, CB, 224, 228, 232)
        p1 = a.label("sp1"); p2 = a.label("sp2")
        def setup():
            if br == 0: a([f"v_add_u32 v{AD}, {8*2048}, v{ADA}", f"s_min_u32 s24, s{QT}, 8", "s_add_u32 s24, s24, 1"])
            else: a([f"v_add_u32 v{AD}, s{KVB}, v2", "s_mov_b32 s24, 64"])
            a("s_mov_b32 s25, 0")
        def bias():
            if br == 0:
                a(["s_cmp_lg_u32 s25, 8", "s_cselect_b64 s[26:27], -1, 0", "s_cmp_lg_u32 s25, 0", "s_cselect_b64 s[28:29], -1, 0"])
                for r in range(16):
                    a([f"s_and_b64 s[30:31], {sr(MK+2*r,2)}, s[26:27]", f"s_andn2_b64 vcc, s[28:29], {sr(MK+2*r,2)}",
                       "s_or_b64 vcc, vcc, s[30:31]", f"v_cndmask_b32 v{C+r}, v{NI}, v{BASE}, vcc"])
            else:
                a([f"v_mov_b32 v{C+r}, v{BASE}" for r in range(16)])
        def nxt(lab):
            a(f"v_add_u32 v{AD}, 2048, v{AD}" if br == 1 else f"v_subrev_u32 v{AD}, 2048, v{AD}")
            a(["s_add_u32 s25, s25, 1", "s_cmp_lt_u32 s25, s24", f"s_cbranch_scc1 {lab}"])
        def ld(dst, off):
            if br == 0: a(f"ds_read_b128 {vr(dst,4)}, v{AD} offset:{off}")
            else: a(f"buffer_load_dwordx4 {vr(dst,4)}, v{AD}, {S4(SWS)}, 0 offen offset:{off} sc1")
        a("s_waitcnt lgkmcnt(0)")
        if True:
            for i in range(4):
                a([f"v_mov_b32 v{V0+i}, v{V0B[0]+i}", f"v_mov_b32 v{V1+i}, v{V0B[0]+i}"])
        a([f"v_mov_b32 v{M}, v{NI}", f"v_mov_b32 v{BASE}, 0"])
        setup()
        a(f"{p1}:")
        ld(KK, 0)
        bias()
        a(["s_waitcnt vmcnt(0) lgkmcnt(0)", "s_nop 1", f"{MFMA} {vr(SS,16)}, {vr(KK,4)}, {vr(Q,4)}, {vr(C,16)}", "s_nop 15"])
        a([f"v_max3_f32 v{M}, v{M}, v{SS+i}, v{SS+i+1}" for i in range(0, 16, 2)])
        nxt(p1)
        a([f"v_mov_b32 v{TM}, v{M}", "s_nop 1", f"v_permlane32_swap_b32 v{M}, v{TM}", "s_nop 1", f"v_max_f32 v{M}, v{M}, v{TM}",
           f"v_sub_f32 v{BASE}, 0, v{M}"])
        a([f"v_mov_b32 v{O+i}, 0" for i in range(16)])
        setup()
        a(f"{p2}:")
        ld(KK, 0)
        a(f"s_mov_b64 exec, s[{VMASK}:{VMASK+1}]")
        ld(V0, 1024)
        ld(V1, 1280)
        a("s_mov_b64 exec, -1")
        bias()
        a(["s_waitcnt vmcnt(0) lgkmcnt(0)", "s_nop 1", f"{MFMA} {vr(SS,16)}, {vr(KK,4)}, {vr(Q,4)}, {vr(C,16)}", "s_nop 15"])
        a([f"v_exp_f32 v{SS+i}, v{SS+i}" for i in range(16)])
        a(["s_nop 2", f"{SMFMAC} {vr(O,16)}, {vr(V0,4)}, {vr(SS,8)}, v{IDX}", f"{SMFMAC} {vr(O,16)}, {vr(V1,4)}, {vr(SS+8,8)}, v{IDX}", "s_nop 7"])
        nxt(p2)
        a("s_nop 15")

    def norm(br):
        O = OA if br == 0 else OB
        L = [f"v_rcp_f32 v{T+2}, v{O+8}"]
        pre = [f"v_sub_f32 v{T+3}, 1.0, v{GV}"] if br == 1 else [f"v_mov_b32 v{T+3}, v{GV}"]
        post = [f"v_mul_f32 v{T+2}, v{T+2}, v{T+3}"]
        post += [f"v_pk_mul_f32 {vr(O+i,2)}, {vr(O+i,2)}, {vr(T+2,2)} op_sel_hi:[1,0]" for i in range(0, 8, 2)]
        post += [f"v_cvt_pk_bf16_f32 v{O+12+i}, v{O+2*i}, v{O+2*i+1}" for i in range(4)]
        return L + pre, post
    def finish_valu(br):
        O = OA if br == 0 else OB
        n0, n1 = norm(br)
        L = n0 + [f"v_add_f32 v{T}, abs(v{O}), abs(v{O+1})", f"v_add_f32 v{T+1}, abs(v{O+2}), abs(v{O+3})"]
        for i in (4, 6):
            L += [f"v_add_f32 v{T}, v{T}, abs(v{O+i})", f"v_add_f32 v{T+1}, v{T+1}, abs(v{O+i+1})"]
        L += [f"v_fmac_f32 v{T}, {hex(f32(2.0**87))}, v{O+8}", f"v_add_f32 v{T}, v{T}, v{T+1}", f"v_cmp_ngt_f32 vcc, 0x7f000000, v{T}"]
        return L + n1
    def finish_tail(br, sreg):
        O = OA if br == 0 else OB
        lb = a.label("fbk"); bk = a.label("fok")
        if cfg.get("force_fallback"): a("s_mov_b64 vcc, -1")
        a([f"s_cbranch_vccnz {lb}", f"{bk}:", f"buffer_store_dwordx4 {vr(O+12,4)}, v2, {S4(SWS)}, s{sreg} offen sc1"])
        def f():
            a(f"{lb}:"); slow(br)
            n0, n1 = norm(br)
            a(n0 + n1 + [f"s_branch {bk}"])
        cold.append(f)

    late = [
        [f"s_lshl_b32 s58, s{QT}, 6", f"s_add_u32 s58, s58, s{HEAD}", "s_lshl_b32 s14, s58, 10",
         f"s_add_u32 s14, s14, {hex(OF_OFF)}", "s_add_u32 s15, s14, 0x8000",
         f"s_lshl_b32 s11, s{QT}, 5", f"s_add_u32 s11, s11, s{HEAD}", f"s_mul_i32 s11, s11, {FSTR}", f"s_add_u32 s11, s11, {hex(FO_OFF)}"],
        [f"s_lshr_b32 s48, s{HEAD}, 3", f"s_lshl_b32 s49, s{QR}, 2", "s_add_u32 s48, s48, s49", "s_lshl_b32 s48, s48, 1",
         f"s_and_b32 s49, s{WV}, 1", "s_add_u32 s48, s48, s49", f"s_lshr_b32 s49, s{WV}, 1", f"s_and_b32 s50, s{HEAD}, 7",
         "s_lshl_b32 s51, s48, 5", "s_lshl_b32 s58, s49, 3", "s_add_u32 s51, s51, s58",
         f"s_mul_i32 s53, s51, {FSTR}", f"s_add_u32 s53, s53, {hex(FO_OFF)}"],
        ["s_lshl_b32 s54, s48, 16", "s_lshl_b32 s58, s49, 13", "s_add_u32 s54, s54, s58", f"s_add_u32 s54, s54, {hex(OF_OFF)}",
         "s_add_u32 s51, s54, 0x8000", "s_add_u32 s52, s54, 0x9000", "s_add_u32 s55, s54, 0x1000",
         "s_lshl_b32 s23, s50, 7", f"s_lshl_b32 s58, s{WV}, 13", "s_add_u32 s23, s23, s58"],
        [f"s_lshl_b32 s20, s{QR}, 3", f"s_lshl_b32 s58, s{WV}, 1", "s_add_u32 s20, s20, s58", "s_sub_i32 s20, s20, 8",
         "s_max_i32 s20, s20, 0", "s_lshl_b32 s20, s20, 11", f"s_add_u32 s20, s20, s{KVA}"],
    ]
    def dma_b(pc):
        return ["s_add_u32 s22, s22, 8192", "s_and_b32 s22, s22, 0x1ffff", f"s_add_u32 m0, s{DM}, {pc*8192}", "s_add_u32 s58, s22, s19",
                f"buffer_load_dwordx4 v2, {S4(SWS)}, s58 offen sc1 lds"]
    def dma_wo(u):
        lu = u
        return [f"s_add_u32 m0, s{DM}, {lu*8192}", f"s_add_u32 s58, s23, {(u & 7)*65536}",
                f"buffer_load_dwordx4 v{WOV}, {S4(SWOB if u >= 8 else SWOA)}, s58 offen lds"]
    def load_o(dst, sb):
        return [f"buffer_load_dwordx4 {vr(dst+4*k,4)}, v2, {S4(SWS)}, s{sb + (k >> 2)} offen offset:{(k&3)*1024} sc1" for k in range(8)]
    X = {t: [] for t in range(-1, 73)}
    XP = {t: [] for t in range(73)}
    XR = {t: [] for t in range(73)}
    V = {t: {} for t in range(73)}
    XM = {}
    def vins(t, pos, lines): V[t].setdefault(pos, []).extend(lines)

    def spread(t, lo, hi, lines):
        n = hi - lo + 1
        for k, l in enumerate(lines):
            vins(t, lo + k * n // len(lines), [l])

    def flag_check(t, mask, reg, poll, tag, wait, hot=None):
        X[t - 1].append(wait)
        vins(t, 15, [f"v_cmp_ne_u64 vcc, {hot or f's[{NON}:{NON+1}]'}, {vr(reg,2)}"])
        lp = a.label(tag); dn = a.label(tag + "d"); l2 = a.label(tag + "r")
        XP[t] += [f"s_and_b32 s58, vcc_lo, {hex(mask)}", f"s_cbranch_scc1 {lp}", f"{dn}:"]
        def slowp():
            a([f"{lp}:", f"s_mov_b32 s62, {SPIN_MAX}", f"s_mov_b64 exec, {hex(mask)}", f"{l2}:"] + poll +
              ["s_waitcnt vmcnt(0)", f"v_cmp_ne_u64 vcc, s[{NON}:{NON+1}], {vr(reg,2)}", "s_sub_u32 s62, s62, 1",
               f"s_cbranch_scc1 {l2}x", f"s_cbranch_vccnz {l2}", f"{l2}x:", "s_mov_b64 exec, -1", f"s_branch {dn}"])
        cold.append(slowp)

    SYV, SYD, SYW = 3, T + 4, T + 5
    def sync(e, ta, tc, wait):
        vins(ta, 15, [f"v_add_u32 v{SYV}, {e}, v{SYB}"])
        if wait: XP[ta].append(wait)
        XR[ta].append(f"ds_write_b32 v{SYW}, v{SYV}")
        XR[tc - 2].append(f"ds_read_b32 v{SYD}, v{SYR}")
        if e == 1:
            cmp_ = [f"v_sub_u32 v{SYD}, v{SYD}, v{SYV}", f"v_cmp_lt_u32 vcc, 3, v{SYD}"]
        else:
            cmp_ = [f"v_sub_u32 v{SYD}, v{SYV}, v{SYD}", f"v_cmp_eq_u32 vcc, 1, v{SYD}"]
        vins(tc, 13, cmp_[:1]); vins(tc, 15, cmp_[1:])
        lp = a.label("sy"); dn = a.label("syd")
        XP[tc] += [f"s_cbranch_vccnz {lp}", f"{dn}:"]
        def slowp():
            a([f"{lp}:", f"s_mov_b32 s62, {SPIN_MAX * 16}", f"{lp}r:", "s_sleep 1", f"ds_read_b32 v{SYD}, v{SYR}", "s_waitcnt lgkmcnt(0)"] + cmp_ +
              ["s_sub_u32 s62, s62, 1", f"s_cbranch_scc1 {dn}", f"s_cbranch_vccnz {lp}r", f"s_branch {dn}"])
        cold.append(slowp)
    SYB = T + 6

    a([f"ds_read_b128 {vr(QB,4)}, v{QST}", rdK(0), rdK(1), f"s_mov_b64 exec, s[{VMASK}:{VMASK+1}]", rdV(0, 0)])
    a(masked(0x3f8, lpoll))
    a(["s_waitcnt lgkmcnt(2)", f"{MFMA} {vr(S[0],16)}, {vr(KBUF[0],4)}, {vr(QB,4)}, 0"])
    tail(-1)
    a([f"s_and_b32 s58, s{NON}, 0x3fff3ff0", f"v_mov_b32 v{SYB}, s58", f"v_readlane_b32 s59, v{SYR}, s{WV}", "s_setprio 1",
       f"v_mov_b64 {vr(T+12,2)}, -1", f"v_mov_b32 v{SYW}, s59"])
    submax(CB)
    a("s_setprio 0")

    T1 = cfg.get("t1", 2)
    flag_check(T1, 0x3f8, PL, fpoll, "F1", "s_waitcnt vmcnt(0)", hot="s[60:61]")
    log = []
    for t, pcs in zip(range(T1, 8), [[3, 4], [5], [6], [7], [8], [9]]):
        for pc in pcs:
            X[t] += dma_b(pc); log.append((t, pc))
        if t == 5:
            X[t] += masked(0xfc00, fpoll); log.append((t, "p"))
    sync(1, 6, 9, f"s_waitcnt vmcnt({sum(1 for t, _ in log if 3 < t < 6)})")
    flag_check(8, 0xfc00, PL, fpoll, "F2", "s_waitcnt vmcnt(2)")
    for t in range(9, 15): X[t] += dma_b(t + 1)
    X[0] += late[0]
    X[1] = late[1] + X[1]
    X[8] += late[2]
    X[16] += late[3]
    TS = cfg.get("ts", 24)
    TF = cfg.get("tf", TS + 14)
    for k in range(4):
        lb = a.label("df")
        X[TS + k] += ["s_cmp_eq_u32 s25, 0", f"s_cbranch_scc1 {lb}",
                      f"buffer_store_dwordx4 {vr(DF+4*k,4)}, v{DA}, {S4(SWS)}, s28 offen sc1",
                      f"s_add_u32 s28, s28, s{29 + (k & 1)}", f"{lb}:"]
    lb = a.label("dg")
    X[TS + 4] += ["s_cmp_lg_u32 s25, 2", f"s_cbranch_scc1 {lb}", "s_mov_b32 exec_hi, 0",
              f"buffer_store_dword v{DG}, v{DGA}, {S4(SWS)}, s24 offen sc1", "s_mov_b64 exec, -1", f"{lb}:"]
    vins(7, 15, [f"v_mov_b64 {vr(T+14,2)}, -1", f"v_mov_b64 {vr(T+8,2)}, s[{NON}:{NON+1}]",
                 f"v_mov_b32 v{T+10}, 0", f"v_and_b32 v{T+11}, 31, v0", f"v_lshlrev_b32 v{T+11}, 2, v{T+11}"])
    X[TS + 5] += [f"buffer_store_dwordx4 {vr(T+12,4)}, v2, {S4(SWS)}, s14 offen sc1"]
    X[TS + 6] += [f"buffer_store_dwordx4 {vr(T+12,4)}, v2, {S4(SWS)}, s15 offen sc1"]
    sync(2, 18, 21, "s_waitcnt vmcnt(0)")
    lb = a.label("fb")
    X[TF] += ["s_waitcnt vmcnt(0)", "s_mov_b64 exec, 1", f"buffer_store_dwordx2 {vr(T+8,2)}, v{T+10}, {S4(SWS)}, s11 offen sc1",
              "s_cmp_eq_u32 s25, 0", f"s_cbranch_scc1 {lb}",
              f"buffer_store_dwordx2 {vr(T+8,2)}, v{T+10}, {S4(SWS)}, s31 offen sc1", f"{lb}:", "s_mov_b64 exec, -1"]
    TA = cfg.get("ta", 43)
    for u in range(4): X[max(21, TF + 1) + u] += dma_wo(u)
    assert max(21, TF + 1) + 3 < TA + 3
    X[TA] += masked(0x7f0000, fpoll)
    X[TA + 1] += masked(0xff, f3poll)
    flag_check(TA + 4, 0x7f0000, PL, fpoll, "F3", "s_waitcnt vmcnt(0)")
    X[TA + 4] += [f"s_lshl_b32 s59, s{WV}, 12", f"s_add_u32 m0, s59, {A_LDS}", f"s_cmp_eq_u32 s{WV}, 0",
                  "s_cselect_b32 exec_lo, -2, -1", "s_mov_b32 exec_hi, exec_lo",
                  f"buffer_load_dwordx4 v2, {S4(SWS)}, s20 offen sc1 lds", "s_mov_b64 exec, -1"]
    for v in range(1, 4):
        X[TA + 4 + ((v + 1) >> 1)] += [f"buffer_load_dwordx4 v2, {S4(SWS)}, s20 offen offset:{v*1024} sc1 lds"]
    X[TA + 6] += [f"s_lshl_b32 s59, s{HEAD}, 6", f"s_add_u32 s59, s59, s{QT}", "s_lshl_b32 s59, s59, 10",
                  f"buffer_load_dwordx4 {vr(QA,4)}, v2, {S4(SWS)}, s59 offen sc1"]
    X[TA + 7] += [f"s_lshl_b32 s58, s{HG}, 13", f"s_lshl_b32 s59, s{QT}, 7", "s_add_u32 s58, s58, s59",
                  f"s_add_u32 s58, s58, {hex(G_OFF)}", f"buffer_load_dword v{GV}, v{T+11}, {S4(SWS)}, s58 offen sc1",
                  "s_add_u32 s58, s58, 0x10000", f"buffer_load_dword v{T+7}, v{T+11}, {S4(SWS)}, s58 offen sc1"]
    spread(56, 3, 13, [f"v_add_f32 v{GV}, v{GV}, v{T+7}", f"v_mul_f32 v{GV}, {hex(f32(-math.log2(math.e)))}, v{GV}", f"v_exp_f32 v{GV}, v{GV}",
                       f"v_add_f32 v{GV}, 1.0, v{GV}", f"v_rcp_f32 v{GV}, v{GV}"])
    flag_check(TA + 9, 0xff, PL + 2, f3poll, "FC", "s_nop 0")
    sync(3, 54, 57, "s_waitcnt vmcnt(0)")
    for u in range(4, 13): X[57 + u - 4] += dma_wo(u)
    KX, SX_ = 192, 196
    XR[PA - 5].append(f"ds_read_b128 {vr(KX,4)}, v{ADA} offset:{8*2048}")
    XM[PA - 3] = [[f"{MFMA} {vr(SX_,16)}, {vr(KX,4)}, {vr(QA,4)}, {vr(CX,16)}"], []]
    m0_, m1_ = T, T + 1
    spread(PA - 2, 2, 7, [f"v_max3_f32 v{m0_}, v{SX_}, v{SX_+1}, v{SX_+2}", f"v_max3_f32 v{m1_}, v{SX_+3}, v{SX_+4}, v{SX_+5}",
                     f"v_max3_f32 v{m0_}, v{m0_}, v{SX_+6}, v{SX_+7}", f"v_max3_f32 v{m1_}, v{m1_}, v{SX_+8}, v{SX_+9}",
                     f"v_max3_f32 v{m0_}, v{m0_}, v{SX_+10}, v{SX_+11}", f"v_max3_f32 v{m1_}, v{m1_}, v{SX_+12}, v{SX_+13}"])
    vins(PA - 2, 8, [f"v_max3_f32 v{m0_}, v{m0_}, v{SX_+14}, v{SX_+15}"])
    vins(PA - 2, 9, [f"v_max_f32 v{m0_}, v{m0_}, v{m1_}"])
    vins(PA - 2, 10, [f"v_mov_b32 v{m1_}, v{m0_}"])
    vins(PA - 2, 12, [f"v_permlane32_swap_b32 v{m0_}, v{m1_}"])
    vins(PA - 2, 14, [f"v_min_f32 v{CA}, -v{m0_}, -v{m1_}", f"v_min_f32 v{CA+1}, -v{m0_}, -v{m1_}"])
    spread(PA - 1, 2, 5, [f"v_pk_add_f32 {vr(CX+r,2)}, {vr(CX+r,2)}, {vr(CA,2)}" for r in range(0, 16, 2)])
    spread(PA - 1, 9, 15, [f"v_mov_b64 {vr(CA+r,2)}, {vr(CA,2)}" for r in range(2, 16, 2)])
    for u in range(1, 8):
        XP[PA - 2 + u].append(lambda u=u: cfix(u))
    spread(PA + 6, 2, 15, [f"v_cndmask_b32 v{CX+r}, v{CA+r}, v{NI}, {sr(MK+2*r,2)}" for r in range(16)])
    def farfix():
        lb = a.label("ff"); bk = a.label("fk")
        a([f"s_cmp_eq_u32 s{QR}, 0", f"s_cbranch_scc1 {lb}", f"{bk}:"])
        cold.append(lambda: a([f"{lb}:"] + [f"v_mov_b32 v{CX+r}, v{NI}" for r in range(16)] + [f"s_branch {bk}"]))
    XP[PA + 6].append(farfix)
    spread(PA + 1, 2, 15, finish_valu(1))
    XP[PA + 1].append(lambda: finish_tail(1, 15))
    sync(4, 63, 66, None)
    X[66] += dma_wo(13) + dma_wo(14)
    X[67] += dma_wo(15)
    lob = load_o(OFB, 51)
    for k in range(4): X[68 + k] += lob[2*k:2*k+2]
    ADV = (24, 48)
    for t in ADV: vins(t, 15, [f"v_add_u32 v{ADR}, {24*2048}, v{ADR}"])
    X[17] += ["s_lshr_b32 s63, s48, 1", "s_lshl_b32 s63, s63, 16", "s_lshl_b32 s59, s50, 7", "s_add_u32 s63, s63, s59"]

    for t in range(72):
        X[t] += cand(f"P{t}")
    for t in range(73):
        nv = sum(1 for k, v in V[t].items() for l in v if "vcc" in l.split(",")[0])
        assert nv <= 1, t
        block(t, first=(t == 0), last=(t == 72), ins=V[t], xm=XM.get(t))
        if t in ADV: abase["b"] += 24 * 2048
        if t < 72:
            tail(t, X[t], XR[t], XP[t])
        if t == 20: st(8)
        if t == 60: st(9)
        if t == 64: st(10)
    a(["s_waitcnt lgkmcnt(0)", "s_nop 0", f"{SMFMAC} {vr(OA,16)}, {vr(V1B[0],4)}, {vr(S[0]+8,8)}, v{IDX}", "s_nop 7", "s_nop 3"])
    a(finish_valu(0))
    finish_tail(0, 14)
    st(11)
    ACC3, ACC4 = 24, 152
    WF = 56
    OFA = 120
    a(cand("Pe0"))
    def valid(ofr):
        return [f"v_max3_u32 v10, v{ofr}, v{ofr+1}, v{ofr+2}", f"v_max3_u32 v9, v{ofr+3}, v{ofr+4}, v{ofr+5}"] + \
               [f"v_max3_u32 v{10 - (k & 1)}, v{10 - (k & 1)}, v{ofr+6+2*k}, v{ofr+7+2*k}" for k in range(13)] + \
               ["v_max_u32 v10, v10, v9", "v_cmp_eq_u32 vcc, -1, v10"]
    a("s_waitcnt vmcnt(9)")
    a("s_barrier")
    st(12)
    def wo_reads(ab):
        return [f"ds_read_b64_tr_b16 {vr(WF+k*8+b*4+t*2,2)}, v{ab+b} offset:{k*2048+t*1024}" for k in range(8) for b in range(2) for t in range(2)]
    rdB = wo_reads(18)
    rdA = wo_reads(16)
    def rd_all(rd):
        for q in range(0, 32, 6):
            if q >= 12: a("s_waitcnt lgkmcnt(8)")
            a(rd[q:q+6])
        a("s_waitcnt lgkmcnt(0)")
    def mm_half(ofr, dst, cin, waits, stream=None, after=None, check=True):
        for k in range(8):
            a(waits(k))
            for b in range(2):
                c = cin(b) if k == 0 else vr(dst + 16*b, 16)
                a(f"{MFMA} {vr(dst+16*b,16)}, {vr(WF+k*8+b*4,4)}, {vr(ofr+4*k,4)}, {c}")
                o = ofr + 4*k + 2*b
                if check: a(f"v_max_u32 v10, v{o}, v{o+1}" if (k == 0 and b == 0) else f"v_max3_u32 v10, v10, v{o}, v{o+1}")
                if stream: a(stream(k, b))
            if after: a(after(k))
        if check: a("v_cmp_eq_u32 vcc, -1, v10")
    OAK = cfg.get("oak", 6)
    loa = load_o(OFA, 54)
    allrd = rdB + rdA
    cnt = {"i": 12}
    def streamB(k, b):
        n = 2 if k < 3 else 3
        lim = 32 + 4 * k
        out = allrd[cnt["i"]: min(cnt["i"] + n, lim)]
        cnt["i"] += len(out)
        return out
    a([f"v_add_u32 v{SYV}, 5, v{SYB}", f"v_mov_b32 v11, v{SYW}"])
    a(allrd[:12])
    a(["s_waitcnt vmcnt(1)"] + valid(OFB))
    a(["s_cbranch_vccnz L_OB", "L_OBD:"])
    cold.insert(0, lambda: a(["L_OB:", f"s_mov_b32 s62, {SPIN_MAX}", "L_OB2:"] + lob + ["s_waitcnt vmcnt(0)"] + valid(OFB) +
                          ["s_sub_u32 s62, s62, 1", "s_cbranch_scc1 L_OBD", "s_cbranch_vccnz L_OB2", "s_branch L_OBD"]))
    def waitB(k):
        n = cnt["i"] - 4 * (k + 1)
        return [f"s_waitcnt lgkmcnt({min(n, 9)})"]
    mm_half(OFB, ACC3, lambda b: "0", waitB, streamB, after=lambda k: loa if k == OAK else [], check=False)
    rest = allrd[cnt["i"]:]
    for q in range(0, len(rest), 5):
        a("s_waitcnt lgkmcnt(9)")
        a(rest[q:q+5])
    if OAK == 8: a(loa)
    a(cand("Pe1"))
    a([f"ds_write_b32 v11, v{SYV}",
       f"s_mov_b32 s62, {SPIN_MAX}", "s_waitcnt lgkmcnt(0)"])
    st(13)
    a(cand("Pe2"))
    a("L_OA:")
    mm_half(OFA, ACC4, lambda b: vr(ACC3 + 16*b, 16), lambda k: [f"s_waitcnt vmcnt({7-k})"],
            after=lambda k: [f"ds_read_b32 v9, v{SYR}"] if k == 6 else [])
    a(["s_sub_u32 s62, s62, 1", "s_cbranch_vccz L_OAD", "s_cbranch_scc1 L_OAD"] + loa + ["s_branch L_OA", "L_OAD:"])
    st(14)
    a(cand("Pe3"))
    a(["s_waitcnt lgkmcnt(0)", f"v_cmp_ne_u32 vcc, v9, v{SYV}", "s_cbranch_vccnz L_SY5", "L_SY5D:"])
    cold.insert(0, lambda: a(["L_SY5:", f"s_mov_b32 s62, {SPIN_MAX * 16}", "L_SY5R:", "s_sleep 1", f"ds_read_b32 v9, v{SYR}", "s_waitcnt lgkmcnt(0)",
                           f"v_cmp_ne_u32 vcc, v9, v{SYV}", "s_sub_u32 s62, s62, 1", "s_cbranch_scc1 L_SY5D", "s_cbranch_vccnz L_SY5R", "s_branch L_SY5D"]))
    for j in range(8):
        if j: a(f"v_xor_b32 v{24+j}, {32*j}, v20")
    for j in range(8):
        a(f"ds_write_b128 v{24+j if j else 20}, {vr(ACC4+4*j,4)}")
    a(["s_waitcnt lgkmcnt(0)", "s_barrier"])
    for u in range(4):
        for r in range(2):
            a(f"ds_read_b128 {vr(WF+u*8+4*r,4)}, v{22+r} offset:{u*16384}")
    for u in range(1, 4):
        a(f"s_waitcnt lgkmcnt({(3-u)*2})")
        for i in range(0, 8, 2):
            a(f"v_pk_add_f32 {vr(WF+i,2)}, {vr(WF+i,2)}, {vr(WF+u*8+i,2)}")
    P = 12
    for i in range(4):
        a(f"v_cvt_pk_bf16_f32 v{P+i}, v{WF+2*i}, v{WF+2*i+1}")
    a(f"buffer_store_dwordx4 {vr(P,4)}, v{OUTA}, {S4(SOUT)}, s63 offen" + ["", " sc1", " nt", " sc0 sc1"][cfg.get("osf", 2)])
    st.flush()
    if cfg.get("tstamp"):
        a(["s_mov_b64 exec, -1", "s_lshl_b32 s100, s2, 3", f"s_add_u32 s100, s100, s{WV}", "s_lshl_b32 s100, s100, 9",
           f"s_add_u32 s100, s100, {hex(STAMP_OFF + (1 << 20))}", "v_lshlrev_b32 v251, 2, v0",
           f"buffer_store_dword v252, v251, {S4(SWS)}, s100 offen", f"buffer_store_dword v253, v251, {S4(SWS)}, s100 offen offset:256"])
    a(["L_END:", "s_endpgm", "CD_zz:"])
    if cfg.get("stubs", 1): a([".p2align 6", "PG_K:", "s_setpc_b64 s[100:101]"])
    while cold:
        cold.pop(0)()

    hdr = open("cdna_kernels/" + NAME + ".s.ref").read().split("; Override launch")[0]
    out = hdr + f"; @launch grid=(256,1,1) block=(512,1,1) lds={LDS_BYTES}\n" + DOC
    out += '.amdgcn_target "amdgcn-amd-amdhsa--gfx950"\n.text\n.set CODE_LEFT, L_END - L_CONS - 64\n' + a.text()
    out += f""".section .rodata,"a"
.p2align 6
.amdhsa_kernel {KNAME}
  .amdhsa_next_free_vgpr 256
  .amdhsa_next_free_sgpr 102
  .amdhsa_accum_offset 256
  .amdhsa_group_segment_fixed_size 0
  .amdhsa_kernarg_size 80
  .amdhsa_user_sgpr_count 2
  .amdhsa_user_sgpr_kernarg_segment_ptr 1
  .amdhsa_system_sgpr_workgroup_id_x 1
.end_amdhsa_kernel
"""
    return out

def addrs(text):
    import subprocess, re
    open("_g.s", "w").write(text)
    r = subprocess.run(["clang", "-x", "assembler", "-target", "amdgcn-amd-amdhsa", "-mcpu=gfx950", "-c", "_g.s", "-o", "_g.o"], capture_output=True, text=True)
    assert r.returncode == 0, r.stderr
    o = subprocess.run(["llvm-objdump", "-t", "_g.o"], capture_output=True, text=True).stdout
    return sorted((int(m.group(1), 16), m.group(2)) for m in re.finditer(r"^([0-9a-f]+) .* CD_(\w+)$", o, re.M))

def gen_paged(cfg):
    if not cfg.get("stubs", 1):
        return gen(cfg)
    cfg = dict(cfg); cfg["_chosen"] = {}
    while True:
        c = addrs(gen(cfg))
        new = None
        for (p, n), (p2, n2) in zip(c, c[1:]):
            if n in cfg["_chosen"] or n2 == "At": continue
            if p >> 12 != (p2 + 4) >> 12:
                new = n; break
        if new is None: break
        cfg["_chosen"][new] = True
    at = [p for p, n in c if n == "At"][0]
    print("page breaks at", list(cfg["_chosen"]), "pass A at", hex(at), "" if at == 0x1000 else "  <<<< loader code leaves the first page")
    return gen(cfg)

if __name__ == "__main__":
    cfg = {}
    outp = "cdna_kernels/" + NAME + ".s"
    for arg in sys.argv[1:]:
        if "=" in arg:
            k, v = arg.split("=")
            cfg[k] = int(v)
        else:
            outp = arg
    open(outp, "w").write(gen_paged(cfg))
    print("wrote", outp)
```
